```python
import torch

def _softmax(x, axis=-1):
    return torch.softmax(x, dim=axis)
def _gelu(x):
    return torch.nn.functional.gelu(x, approximate="tanh")
def _silu(x):
    return torch.nn.functional.silu(x)
def _sigmoid(x):
    return torch.sigmoid(x)
def _layernorm(x, axis=-1, eps=1e-5):
    m = x.mean(dim=axis, keepdim=True)
    v = x.var(dim=axis, keepdim=True, unbiased=False)
    return (x - m) / torch.sqrt(v + eps)
def _scatter_add(tgt, idx, src, axis=0):
    return tgt.clone().index_add_(axis, idx, src)
def _segment_sum(src, seg, n):
    out = torch.zeros((n,) + src.shape[1:], dtype=src.dtype)
    return out.index_add_(0, seg, src)
def _pad(x, pw):
    flat = tuple(v for pair in reversed(pw) for v in pair)
    return torch.nn.functional.pad(x, flat)

kernel_name = 'standalone__fused_io_aware_attn__prompt'

def setup_inputs():

    _w = (lambda a: (lambda t: t.to(torch.bfloat16) if t.is_floating_point() else t)(torch.as_tensor(a)))
    B, H, S = 1, 32, 2048
    Dh = max(1, 640 // 32)
    return {
        "q": _w((lambda *s: torch.randn(*s, dtype=torch.bfloat16) * 0.8)(B, H, S, Dh)),
        "k": _w((lambda *s: torch.randn(*s, dtype=torch.bfloat16) * 0.8)(B, H, S, Dh)),
        "v": _w((lambda *s: torch.randn(*s, dtype=torch.bfloat16) * 0.05)(B, H, S, Dh)),
    }

def reference(q, k, v):
    scale = q.shape[-1] ** -0.5
    s = torch.einsum('bhqd,bhkd->bhqk', q, k) * scale
    p = _softmax(s, axis=-1)
    return torch.einsum('bhqk,bhkd->bhqd', p, v)
```

```python
import sys, struct, math

NAME = "standalone__fused_io_aware_attn__prompt"
H, S, D = 32, 2048, 20
ROWB = D * 2
HEADB = S * ROWB
TOTB = H * HEADB
KBASE = 0
VBASE = 81920
VRING = 61440
ONES = VBASE + VRING
LDS = 163840
BLK = 64 * ROWB
TRIPB = 8 * BLK

def f32(x): return struct.unpack("<I", struct.pack("<f", x))[0]
CSCALE = f32(D ** -0.5 * math.log2(math.e))

SA, SB, O = 0, 32, 64
QM, QR = 80, 84
KA, KB_, KR = 86, 90, 94
V0 = 96
IDX, VKM, VKR, VV, VINC, VWRAP, VDMA, VQ = 112, 113, 114, 115, 116, 117, 118, 119
T = 120
NV = 128
sWAVE, sHEADOFF, sTRIP, sM0, sSOFF, sISF, sM0W = 33, 34, 35, 36, 37, 38, 39

out = []
def emit(s=""): out.append(s)
def I(s): out.append("    " + s)

def burst(par, extra=None):
    Sx = SA if par == 0 else SB
    N = SB if par == 0 else SA
    e = lambda i: f"v_exp_f32 v{Sx+i}, v{Sx+i}"
    a = f"v_mfma_f32_32x32x16_bf16 v[{N}:{N+15}], v[{KA}:{KA+3}], v[{QM}:{QM+3}], 0"
    b = f"v_mfma_f32_32x32x16_bf16 v[{N+16}:{N+31}], v[{KB_}:{KB_+3}], v[{QM}:{QM+3}], 0"
    c = f"v_mfma_f32_32x32x4_2b_bf16 v[{N}:{N+31}], v[{KR}:{KR+1}], v[{QR}:{QR+1}], v[{N}:{N+31}] blgp:1"
    s = [f"v_smfmac_f32_32x32x32_bf16 v[{O}:{O+15}], v[{V0+4*j}:{V0+4*j+3}], v[{Sx+8*j}:{Sx+8*j+7}], v{IDX}" for j in range(4)]
    seq = [e(0), "s_setprio 1", e(1), e(2), e(3), e(4), a, e(5), e(6), e(7), b, e(8), e(9), e(10), s[0], e(11), e(12), e(13), c]
    seq += [e(i) for i in range(14, 22)] + [s[1], e(22), e(23), e(24), e(25), s[2]]
    seq += [e(i) for i in range(26, 32)]
    if extra:
        seq += extra
        if len(extra) < 2: seq += ["s_nop 0"]
    else:
        seq += ["s_nop 1"]
    seq += [s[3], "s_setprio 0"]
    for x in seq: I(x)

def kreads(blk):
    o = blk * BLK
    I(f"ds_read_b64 v[{KA}:{KA+1}], v{VKM} offset:{o}")
    I(f"ds_read_b64 v[{KA+2}:{KA+3}], v{VKM} offset:{o+8}")
    I(f"ds_read_b64 v[{KB_}:{KB_+1}], v{VKM} offset:{o+32*ROWB}")
    I(f"ds_read_b64 v[{KB_+2}:{KB_+3}], v{VKM} offset:{o+32*ROWB+8}")
    I(f"ds_read_b64 v[{KR}:{KR+1}], v{VKR} offset:{o}")
def voff(blk, j): return blk * BLK + ROWB * (16 * (j // 2) + 4 * (j % 2))
def vreads(blk):
    for j in range(8):
        I(f"ds_read_b64_tr_b16 v[{V0+2*j}:{V0+2*j+1}], v{VV} offset:{voff(blk, j)}")

hdr = open("cdna_kernels/%s.s.ref" % NAME).read().split("; Override")[0]
emit(hdr.rstrip())
emit("; Override launch geometry by editing the next line.")
emit(f"; @launch grid=(256,1,1) block=(512,1,1) lds={LDS}")
emit(""";
""")
emit('.amdgcn_target "amdgcn-amd-amdhsa--gfx950"')
emit(".text")
emit(f".globl {NAME}_kernel")
emit(".p2align 8")
emit(f".type {NAME}_kernel,@function")
emit(f"{NAME}_kernel:")
I("s_cmp_ge_u32 s2, 256")
I("s_cbranch_scc1 L_END")
I("s_load_dwordx8 s[4:11], s[0:1], 0")
I(f"v_lshrrev_b32 v{T}, 6, v0")
I(f"v_and_b32 v{T+1}, 63, v0")
I(f"v_readfirstlane_b32 s{sWAVE}, v{T}")
I("s_and_b32 s40, s2, 7")
I("s_lshl_b32 s40, s40, 2")
I("s_lshr_b32 s41, s2, 6")
I("s_add_u32 s40, s40, s41")
I(f"s_mul_i32 s{sHEADOFF}, s40, {HEADB}")
I("s_lshr_b32 s41, s2, 3")
I("s_and_b32 s41, s41, 7")
I("s_lshl_b32 s41, s41, 3")
I(f"s_add_u32 s41, s41, s{sWAVE}")
I(f"s_mul_i32 s41, s41, {32*ROWB}")
I(f"s_add_u32 s41, s41, s{sHEADOFF}")
I(f"v_and_b32 v{T+2}, 31, v{T+1}")
I(f"v_lshrrev_b32 v{T+3}, 5, v{T+1}")
I(f"v_mul_u32_u24 v{VKM}, {ROWB}, v{T+2}")
I(f"v_lshl_add_u32 v{VKM}, v{T+3}, 4, v{VKM}")
I(f"v_add_u32 v{VQ}, s41, v{VKM}")
I(f"s_and_b32 s42, s{sWAVE}, 3")
I("s_lshl_b32 s42, s42, 10")
I(f"s_add_u32 s43, s42, s{sHEADOFF}")
I(f"v_lshl_add_u32 v{VDMA}, v{T+1}, 4, s43")
I(f"s_lshr_b32 s{sISF}, s{sWAVE}, 2")
I(f"s_mul_i32 s{sM0W}, s{sISF}, {VBASE}")
I(f"s_add_u32 s{sM0W}, s{sM0W}, s42")
I(f"s_mov_b32 s14, {TOTB}")
I("s_mov_b32 s15, 0x00020000")
I(f"s_mov_b32 s18, {TOTB}")
I("s_mov_b32 s19, 0x00020000")
I(f"s_cmp_eq_u32 s{sISF}, 0")
I("s_waitcnt lgkmcnt(0)")
I("s_mov_b32 s12, s4")
I("s_mov_b32 s13, s5")
I("s_cselect_b32 s16, s6, s8")
I("s_cselect_b32 s17, s7, s9")
I(f"s_mov_b32 m0, s{sM0W}")
I(f"buffer_load_dwordx4 v[{QM}:{QM+3}], v{VQ}, s[12:15], 0 offen")
I(f"buffer_load_dwordx2 v[{QR}:{QR+1}], v{VQ}, s[12:15], 0 offen offset:32")
I(f"s_mov_b32 s{sSOFF}, 0")
for r in range(5):
    I(f"buffer_load_dwordx4 v{VDMA}, s[16:19], s{sSOFF} offen lds")
    I("s_add_u32 m0, m0, 4096")
    I(f"s_add_u32 s{sSOFF}, s{sSOFF}, 4096")
I(f"s_cmp_eq_u32 s{sISF}, 0")
I("s_cbranch_scc0 L_NOPRIO")
I("s_setprio 1")
emit("L_NOPRIO:")
I("s_mov_b32 s20, s10")
I("s_mov_b32 s21, s11")
I(f"s_mov_b32 s22, {TOTB}")
I("s_mov_b32 s23, 0x00020000")
I(f"v_mul_u32_u24 v{VKR}, {ROWB}, v{T+1}")
I(f"v_add_u32 v{VKR}, 32, v{VKR}")
I(f"v_mov_b32 v{IDX}, 0xdddddddd")
I(f"v_bfe_u32 v{T+4}, v{T+1}, 2, 2")
I(f"v_lshl_add_u32 v{T+4}, v{T+3}, 3, v{T+4}")
I(f"v_mul_u32_u24 v{T+4}, {ROWB}, v{T+4}")
I(f"v_and_b32 v{T+5}, 1, v{T+1}")
I(f"v_lshl_add_u32 v{T+4}, v{T+5}, 4, v{T+4}")
I(f"v_bfe_u32 v{T+5}, v{T+1}, 1, 1")
I(f"v_lshl_add_u32 v{T+4}, v{T+5}, 3, v{T+4}")
I(f"v_bfe_u32 v{T+5}, v{T+1}, 4, 1")
I(f"v_lshl_add_u32 v{T+4}, v{T+5}, 5, v{T+4}")
I(f"v_add_u32 v{T+4}, {VBASE}, v{T+4}")
I(f"v_and_b32 v{T+5}, 19, v{T+1}")
I(f"v_cmp_lt_u32 vcc, 16, v{T+5}")
I(f"v_mov_b32 v{T+6}, {ONES}")
I("s_nop 0")
I(f"v_cndmask_b32 v{VV}, v{T+4}, v{T+6}, vcc")
I(f"v_cndmask_b32 v{VINC}, 1, 0, vcc")
I(f"v_lshrrev_b32 v{T+4}, 3, v{T+1}")
I(f"v_mul_u32_u24 v{T+4}, {BLK}, v{T+4}")
I(f"v_bfe_u32 v{T+5}, v{T+1}, 1, 2")
I(f"v_mul_u32_u24 v{T+5}, {16*ROWB}, v{T+5}")
I(f"v_add3_u32 v{T+4}, v{T+4}, v{T+5}, v{T+6}")
I(f"v_and_b32 v{T+5}, 1, v{T+1}")
I(f"v_mul_u32_u24 v{T+5}, {4*ROWB}, v{T+5}")
I(f"v_add_u32 v{T+4}, v{T+4}, v{T+5}")
I(f"v_mov_b32 v{T+6}, 0x3f803f80")
I(f"v_mov_b32 v{T+7}, 0x3f803f80")
I(f"ds_write_b64 v{T+4}, v[{T+6}:{T+7}]")
for i in range(16):
    I(f"v_mov_b32 v{O+i}, 0")
I(f"s_mov_b32 s{sTRIP}, 0")
I(f"s_mov_b32 s40, 0x{CSCALE:08x}")
I("s_waitcnt vmcnt(5)")
for i in range(6):
    r = QM + i
    I(f"v_lshlrev_b32 v{T}, 16, v{r}")
    I(f"v_and_b32 v{T+1}, 0xffff0000, v{r}")
    I(f"v_mul_f32 v{T}, s40, v{T}")
    I(f"v_mul_f32 v{T+1}, s40, v{T+1}")
    I(f"v_cvt_pk_bf16_f32 v{r}, v{T}, v{T+1}")
I("s_waitcnt vmcnt(3) lgkmcnt(0)")
I("s_barrier")
kreads(0)
I("s_waitcnt lgkmcnt(0)")
I(f"v_mfma_f32_32x32x16_bf16 v[{SA}:{SA+15}], v[{KA}:{KA+3}], v[{QM}:{QM+3}], 0")
I(f"v_mfma_f32_32x32x16_bf16 v[{SA+16}:{SA+31}], v[{KB_}:{KB_+3}], v[{QM}:{QM+3}], 0")
I("s_nop 9")
I(f"v_mfma_f32_32x32x4_2b_bf16 v[{SA}:{SA+31}], v[{KR}:{KR+1}], v[{QR}:{QR+1}], v[{SA}:{SA+31}] blgp:1")
I("s_nop 5")
emit(".p2align 3")
emit("L_LOOP:")
for p in range(8):
    emit(f"; ---- step {p}")
    if p == 7 or p == 2:
        I(f"s_cmp_lg_u32 s{sISF}, 0")
        I(f"s_cbranch_scc1 L_LB{p}")
        I(f"s_cmp_ge_u32 s{sTRIP}, {3 if p == 7 else 1}")
        I(f"s_cbranch_scc1 L_LB{p}")
        I(f"s_waitcnt vmcnt({0 if p == 7 else 2})")
        I("s_barrier")
        emit(f"L_LB{p}:")
    kreads((p + 1) % 8)
    vreads(p)
    if p < 5:
        I(f"s_cmp_ge_u32 s{sTRIP}, 3")
        I(f"s_cbranch_scc1 L_ND{p}")
        I(f"buffer_load_dwordx4 v{VDMA}, s[16:19], s{sSOFF} offen lds")
        I("s_add_u32 m0, m0, 4096")
        I(f"s_add_u32 s{sSOFF}, s{sSOFF}, 4096")
        emit(f"L_ND{p}:")
    if p == 5:
        I(f"s_add_u32 s41, s{sTRIP}, s{sISF}")
        I(f"s_mul_i32 s41, s41, s{sISF}")
        I("s_cmp_eq_u32 s41, 2")
        I(f"s_cselect_b32 m0, s{sM0W}, m0")
        I(f"s_mov_b32 s47, {TRIPB}")
        I(f"s_cmp_eq_u32 s{sTRIP}, 2")
        I(f"s_cselect_b32 s47, {-2*TRIPB}, s47")
    I("s_waitcnt lgkmcnt(0)")
    if p == 6 or p == 1:
        I(f"s_cmp_eq_u32 s{sISF}, 0")
        I(f"s_cbranch_scc1 L_FB{p}")
        I(f"s_cmp_ge_u32 s{sTRIP}, {3 if p == 6 else 1}")
        I(f"s_cbranch_scc1 L_FB{p}")
        I(f"s_waitcnt vmcnt({0 if p == 6 else 2})")
        I("s_barrier")
        emit(f"L_FB{p}:")
    extra = None
    if p == 6:
        extra = [f"v_add_u32 v{VKM}, {TRIPB}, v{VKM}", f"v_add_u32 v{VKR}, {TRIPB}, v{VKR}"]
    if p == 7:
        extra = [f"v_mad_i32_i24 v{VV}, v{VINC}, s47, v{VV}"]
    if p == 3:
        pass
    burst(p & 1, extra)
I(f"s_add_u32 s{sTRIP}, s{sTRIP}, 1")
I(f"s_cmp_lt_u32 s{sTRIP}, 4")
I("s_cbranch_scc1 L_LOOP")
I("s_nop 7")
emit("L_FIN:")
I(f"v_rcp_f32 v{T}, v{O+12}")
I(f"v_cmp_le_f32 vcc, 1.0, v{O+12}")
I(f"s_mov_b32 s40, 0x71800000")
I(f"v_cmp_ge_f32 s[42:43], s40, v{O+12}")
for i in range(12):
    I(f"v_mul_f32 v{O+i}, v{T}, v{O+i}")
I("s_and_b64 vcc, vcc, s[42:43]")
for i in range(6):
    I(f"v_cvt_pk_bf16_f32 v{SA+i}, v{O+2*i}, v{O+2*i+1}")
I(f"v_mov_b32 v{T+1}, 0")
for i in range(6):
    I(f"v_dot2_f32_bf16 v{T+1}, v{SA+i}, 0, v{T+1}")
I("s_nop 2")
I(f"v_cmp_eq_f32 s[42:43], 0, v{T+1}")
I(f"s_cmp_eq_u32 s{sTRIP}, 5")
I("s_cbranch_scc1 L_STORE")
I("s_and_b64 vcc, vcc, s[42:43]")
I("s_cmp_eq_u64 vcc, -1")
I("s_cbranch_scc0 L_FALLBACK")
emit("L_STORE:")
I(f"buffer_store_dwordx4 v[{SA}:{SA+3}], v{VQ}, s[20:23], 0 offen")
I("s_mov_b32 exec_hi, 0")
I(f"buffer_store_dwordx2 v[{SA+4}:{SA+5}], v{VQ}, s[20:23], 0 offen offset:32")
emit("L_END:")
I("s_endpgm")

emit("L_FALLBACK:")
I(f"s_mov_b32 s{sTRIP}, 5")
I("s_mov_b32 s24, s6")
I("s_mov_b32 s25, s7")
I(f"s_mov_b32 s26, {TOTB}")
I("s_mov_b32 s27, 0x00020000")
I("s_mov_b32 s28, s8")
I("s_mov_b32 s29, s9")
I(f"s_mov_b32 s30, {TOTB}")
I("s_mov_b32 s31, 0x00020000")
I(f"v_mbcnt_lo_u32_b32 v{T+1}, -1, 0")
I(f"v_mbcnt_hi_u32_b32 v{T+1}, -1, v{T+1}")
I(f"v_and_b32 v{T+2}, 31, v{T+1}")
I(f"v_lshrrev_b32 v{T+3}, 5, v{T+1}")
I(f"v_mul_u32_u24 v{VKM}, {ROWB}, v{T+2}")
I(f"v_lshl_add_u32 v{VKM}, v{T+3}, 4, v{VKM}")
I(f"v_add_u32 v{VKM}, s{sHEADOFF}, v{VKM}")
I(f"v_mul_u32_u24 v{VKR}, {ROWB}, v{T+1}")
I(f"v_add_u32 v{VKR}, s{sHEADOFF}, v{VKR}")
I(f"v_mul_u32_u24 v{VV}, {8*ROWB}, v{T+3}")
I(f"v_bfe_u32 v{T+4}, v{T+2}, 2, 1")
I(f"v_lshl_add_u32 v{VV}, v{T+4}, 4, v{VV}")
I(f"v_bfe_u32 v{T+4}, v{T+2}, 3, 1")
I(f"v_lshl_add_u32 v{VV}, v{T+4}, 3, v{VV}")
I(f"v_bfe_u32 v{T+4}, v{T+2}, 4, 1")
I(f"v_lshl_add_u32 v{VV}, v{T+4}, 5, v{VV}")
I(f"v_and_b32 v{T+4}, 3, v{T+2}")
I(f"v_lshl_add_u32 v{VV}, v{T+4}, 1, v{VV}")
I(f"v_add_u32 v{VV}, s{sHEADOFF}, v{VV}")
I(f"v_cmp_gt_u32 s[44:45], 20, v{T+2}")
for i in range(16):
    I(f"v_mov_b32 v{V0+i}, 0x3f803f80")
    I(f"v_mov_b32 v{O+i}, 0")
I(f"v_mov_b32 v{T+5}, 0xff800000")
def fb_qk():
    I(f"buffer_load_dwordx4 v[{KA}:{KA+3}], v{VKM}, s[24:27], s46 offen")
    I(f"buffer_load_dwordx4 v[{KB_}:{KB_+3}], v{VKM}, s[24:27], s46 offen offset:{32*ROWB}")
    I(f"buffer_load_dwordx2 v[{KR}:{KR+1}], v{VKR}, s[24:27], s46 offen offset:32")
    I("s_waitcnt vmcnt(0)")
    I(f"v_mfma_f32_32x32x16_bf16 v[{SA}:{SA+15}], v[{KA}:{KA+3}], v[{QM}:{QM+3}], 0")
    I(f"v_mfma_f32_32x32x16_bf16 v[{SA+16}:{SA+31}], v[{KB_}:{KB_+3}], v[{QM}:{QM+3}], 0")
    I("s_nop 9")
    I(f"v_mfma_f32_32x32x4_2b_bf16 v[{SA}:{SA+31}], v[{KR}:{KR+1}], v[{QR}:{QR+1}], v[{SA}:{SA+31}] blgp:1")
    I("s_nop 15")
    I("s_nop 4")
I("s_mov_b32 s46, 0")
emit("L_FB_MAX:")
fb_qk()
for i in range(16):
    I(f"v_max3_f32 v{T+5}, v{SA+2*i}, v{SA+2*i+1}, v{T+5}")
I(f"s_add_u32 s46, s46, {BLK}")
I(f"s_cmp_lt_u32 s46, {HEADB}")
I("s_cbranch_scc1 L_FB_MAX")
I(f"v_mov_b32 v{T+6}, v{T+5}")
I("s_nop 1")
I(f"v_permlane32_swap_b32 v{T+5}, v{T+6}")
I("s_nop 1")
I(f"v_max_f32 v{T+5}, v{T+5}, v{T+6}")
I("s_mov_b32 s46, 0")
emit("L_FB_PV:")
I("s_mov_b64 exec, s[44:45]")
for j in range(4):
    for t in range(8):
        I(f"buffer_load_ushort v{SB+8*j+t}, v{VV}, s[28:31], s46 offen offset:{(16*j+t)*ROWB}")
I("s_waitcnt vmcnt(0)")
for i in range(16):
    I(f"v_lshl_or_b32 v{V0+i}, v{SB+2*i+1}, 16, v{SB+2*i}")
I("s_mov_b64 exec, -1")
fb_qk()
for i in range(32):
    I(f"v_sub_f32 v{SA+i}, v{SA+i}, v{T+5}")
for i in range(32):
    I(f"v_exp_f32 v{SA+i}, v{SA+i}")
I("s_nop 1")
for j in range(4):
    I(f"v_smfmac_f32_32x32x32_bf16 v[{O}:{O+15}], v[{V0+4*j}:{V0+4*j+3}], v[{SA+8*j}:{SA+8*j+7}], v{IDX}")
I(f"s_add_u32 s46, s46, {BLK}")
I(f"s_cmp_lt_u32 s46, {HEADB}")
I("s_cbranch_scc1 L_FB_PV")
I("s_nop 15")
I("s_branch L_FIN")

emit('.section .rodata,"a"')
emit(".p2align 6")
emit(f".amdhsa_kernel {NAME}_kernel")
emit(f"  .amdhsa_next_free_vgpr {NV}")
emit("  .amdhsa_next_free_sgpr 64")
emit(f"  .amdhsa_accum_offset {NV}")
emit("  .amdhsa_group_segment_fixed_size 0")
emit("  .amdhsa_kernarg_size 48")
emit("  .amdhsa_user_sgpr_count 2")
emit("  .amdhsa_user_sgpr_kernarg_segment_ptr 1")
emit("  .amdhsa_system_sgpr_workgroup_id_x 1")
emit(".end_amdhsa_kernel")
path = sys.argv[1] if len(sys.argv) > 1 else f"cdna_kernels/{NAME}.s"
open(path, "w").write("\n".join(out) + "\n")
```

```python
import sys, struct, math, os

NAME = "standalone__fused_io_aware_attn__prompt"
H, S, D = 32, 2048, 20
ROWB = D * 2
HEADB = S * ROWB
TOTB = H * HEADB
VBASE = 81920
VRING = 61440
ONES = VBASE + VRING
BLK = 64 * ROWB
NSTEP = 4
TRIPB = NSTEP * BLK
LDS = ONES + TRIPB

OPT = set(os.environ.get("OPT", "").split(","))
PROF = os.environ.get("PROF", "") == "1"
ALIGN = int(os.environ.get("ALIGN", "6"))
PADN = int(os.environ.get("PADN", "0"))
STFLAG = os.environ.get("STFLAG", "")

def f32(x): return struct.unpack("<I", struct.pack("<f", x))[0]
CSCALE = f32(D ** -0.5 * math.log2(math.e))

SA, SB, O = 0, 32, 64
QM, QR = 80, 84
KA, KB_, KR = 86, 90, 94
V0 = 96
IDX, VKM, VKR, VV, VINC, VDUM, VDMA, VQ = 112, 113, 114, 115, 116, 117, 118, 119
T = 120
NV = 128
sWAVE, sHEADOFF, sTRIP, sMASK, sSOFF, sISF, sLIM, sQOFF, sVINC = 33, 34, 35, 36, 37, 38, 39, 46, 47

out = []
def emit(s=""): out.append(s)
def I(s): out.append("    " + s)
def stamp(i):
    if PROF: I(f"s_memtime s[{64+2*i}:{65+2*i}]")
def rstamp(i):
    if PROF: I(f"s_memrealtime s[{64+2*i}:{65+2*i}]")

def mf_a(N, K=KA, c="0"): return f"v_mfma_f32_32x32x16_bf16 v[{N}:{N+15}], v[{K}:{K+3}], v[{QM}:{QM+3}], {c}"
def mf_c(N, K=KR, c=None): return f"v_mfma_f32_32x32x4_2b_bf16 v[{N}:{N+31}], v[{K}:{K+1}], v[{QR}:{QR+1}], {c or f'v[{N}:{N+31}]'} blgp:1"
def mf_s(Sx, j): return f"v_smfmac_f32_32x32x32_bf16 v[{O}:{O+15}], v[{V0+4*j}:{V0+4*j+3}], v[{Sx+8*j}:{Sx+8*j+7}], v{IDX}"

def burst(par, extra=None, last=False):
    Sx = SA if par == 0 else SB
    N = SB if par == 0 else SA
    e = lambda i: f"v_exp_f32 v{Sx+i}, v{Sx+i}"
    a, b, c = mf_a(N), mf_a(N+16, KB_), mf_c(N)
    s = [mf_s(Sx, j) for j in range(4)]
    seq = [e(0), "s_setprio 1", e(1), e(2), e(3), e(4), a, e(5), e(6), e(7), b, e(8), e(9), e(10), s[0], e(11), e(12), e(13), c]
    seq += [e(i) for i in range(14, 22)] + [s[1], e(22), e(23), e(24), e(25), s[2]]
    seq += [e(i) for i in range(26, 32)]
    if last:
        seq = [x for x in seq if x not in (a, b, c)]
    if extra:
        seq += extra
        if len(extra) < 2: seq += ["s_nop 0"]
    else:
        seq += ["s_nop 1"]
    seq += [s[3], "s_setprio 0"]
    for x in seq: I(x)

def kreads(blk, ka=KA, kb=KB_, kr=KR):
    o = blk * BLK
    I(f"ds_read_b64 v[{kr}:{kr+1}], v{VKR} offset:{o}")
    I(f"ds_read_b64 v[{ka}:{ka+1}], v{VKM} offset:{o}")
    I(f"ds_read_b64 v[{ka+2}:{ka+3}], v{VKM} offset:{o+8}")
    I(f"ds_read_b64 v[{kb}:{kb+1}], v{VKM} offset:{o+32*ROWB}")
    I(f"ds_read_b64 v[{kb+2}:{kb+3}], v{VKM} offset:{o+32*ROWB+8}")
def voff(blk, j): return blk * BLK + ROWB * (16 * (j // 2) + 4 * (j % 2))
def vreads(blk):
    for j in range(8):
        I(f"ds_read_b64_tr_b16 v[{V0+2*j}:{V0+2*j+1}], v{VV} offset:{voff(blk, j)}")
def dma():
    I(f"buffer_load_dwordx4 v{VDMA}, s[16:19], s{sSOFF} offen lds")
    I("s_add_u32 m0, m0, 4096")
    I(f"s_add_u32 s{sSOFF}, s{sSOFF}, 4096")
def qconv(r):
    I(f"v_lshlrev_b32 v{T}, 16, v{r}")
    I(f"v_and_b32 v{T+1}, 0xffff0000, v{r}")
    I(f"v_mul_f32 v{T}, s40, v{T}")
    I(f"v_mul_f32 v{T+1}, s40, v{T+1}")
    I(f"v_cvt_pk_bf16_f32 v{r}, v{T}, v{T+1}")

hdr = open("cdna_kernels/%s.s.ref" % NAME).read().split("; Override")[0]
emit(hdr.rstrip())
emit("; Override launch geometry by editing the next line.")
emit(f"; @launch grid=(256,1,1) block=(512,1,1) lds={LDS}")
emit(""";
""")
emit('.amdgcn_target "amdgcn-amd-amdhsa--gfx950"')
emit(".text")
emit(f".globl {NAME}_kernel")
emit(".p2align 12")
emit(".p2align 8")
emit(f".type {NAME}_kernel,@function")
emit(f"{NAME}_kernel:")
rstamp(8)
stamp(0)
I("s_load_dwordx8 s[4:11], s[0:1], 0")
if PROF: I("s_load_dwordx2 s[60:61], s[0:1], 40")
I("s_cmp_ge_u32 s2, 256")
I("s_cbranch_scc1 L_END")
I(f"v_lshrrev_b32 v{T}, 6, v0")
I(f"v_and_b32 v{T+1}, 63, v0")
I(f"v_readfirstlane_b32 s{sWAVE}, v{T}")
I("s_and_b32 s40, s2, 7")
I("s_lshl_b32 s40, s40, 2")
I("s_lshr_b32 s41, s2, 6")
I("s_add_u32 s40, s40, s41")
I(f"s_mul_i32 s{sHEADOFF}, s40, {HEADB}")
I("s_and_b32 s41, s2, 0x38")
I(f"s_add_u32 s41, s41, s{sWAVE}")
I(f"s_mul_i32 s41, s41, {32*ROWB}")
I(f"s_add_u32 s{sQOFF}, s41, s{sHEADOFF}")
I(f"v_and_b32 v{T+2}, 31, v{T+1}")
I(f"v_lshrrev_b32 v{T+3}, 5, v{T+1}")
I(f"v_mul_u32_u24 v{VKM}, {ROWB}, v{T+2}")
I(f"v_lshl_add_u32 v{VKM}, v{T+3}, 4, v{VKM}")
I(f"v_add_u32 v{VQ}, s{sQOFF}, v{VKM}")
I(f"s_lshr_b32 s{sISF}, s{sWAVE}, 2")
I(f"s_sub_u32 s42, s{sWAVE}, s{sISF}")
I("s_and_b32 s42, s42, 3")
I("s_lshl_b32 s42, s42, 10")
I(f"s_add_u32 s43, s42, s{sHEADOFF}")
I(f"v_lshl_add_u32 v{VDMA}, v{T+1}, 4, s43")
I(f"s_mul_i32 s43, s{sISF}, {VBASE}")
I("s_add_u32 s43, s43, s42")
I(f"s_mov_b32 s14, {TOTB}")
I("s_mov_b32 s15, 0x00020000")
I("s_mov_b32 s18, s14")
I("s_mov_b32 s19, s15")
I(f"s_mov_b32 s{sSOFF}, 0")
I("s_movk_i32 m0, 4096")
I(f"s_cmp_eq_u32 s{sWAVE}, 4")
I("s_waitcnt lgkmcnt(0)")
stamp(1)
if "stouch" in OPT:
    I(f"s_load_dword s50, s[8:9], s{sHEADOFF}")
    I(f"s_load_dword s51, s[4:5], s{sQOFF}")
    I(f"s_load_dword s52, s[6:7], s{sHEADOFF}")
    if "stouch4" in OPT: I(f"s_load_dword s53, s[10:11], s{sQOFF}")
I("s_mov_b32 s16, s6")
I("s_mov_b32 s17, s7")
I("s_cbranch_scc0 L_NOK4")
I("s_movk_i32 s44, 1024")
I(f"buffer_load_dwordx4 v{VDMA}, s[16:19], s44 offen lds")
emit("L_NOK4:")
I(f"s_cmp_eq_u32 s{sISF}, 0")
I("s_mov_b32 m0, s43")
I("s_cselect_b32 s16, s6, s8")
I("s_cselect_b32 s17, s7, s9")
I("s_mov_b32 s12, s4")
I("s_mov_b32 s13, s5")
dma()
if "qbar" in OPT: I("s_barrier")
I(f"buffer_load_dwordx2 v[{QR}:{QR+1}], v{VQ}, s[12:15], 0 offen offset:32")
I(f"buffer_load_dwordx4 v[{QM}:{QM+3}], v{VQ}, s[12:15], 0 offen")
I(f"s_cmp_eq_u32 s{sISF}, 0")
maskL = sum(1 << b for b in (1, 3, 7, 11, 19)); maskF = maskL >> 1
I(f"s_cselect_b32 s{sMASK}, {maskL}, {maskF}") if False else None
I(f"s_mov_b32 s{sMASK}, {maskL}")
I(f"s_lshr_b32 s{sMASK}, s{sMASK}, s{sISF}")
I(f"s_cmp_eq_u32 s{sISF}, 0")
I(f"s_cselect_b32 s{sLIM}, -1, {ONES}") if False else None
I(f"s_mov_b32 s{sLIM}, {ONES}")
I("s_cbranch_scc0 L_NOPRIO")
I("s_setprio 1")
I(f"s_mov_b32 s{sLIM}, -1")
emit("L_NOPRIO:")
I("s_mov_b32 s20, s10")
I("s_mov_b32 s21, s11")
I("s_mov_b32 s22, s14")
I("s_mov_b32 s23, s15")
I(f"v_mul_u32_u24 v{VKR}, {ROWB}, v{T+1}")
I(f"v_add_u32 v{VKR}, 32, v{VKR}")
I(f"v_mov_b32 v{IDX}, 0xdddddddd")
I(f"v_bfe_u32 v{T+4}, v{T+1}, 2, 2")
I(f"v_lshl_add_u32 v{T+4}, v{T+3}, 3, v{T+4}")
I(f"v_mul_u32_u24 v{T+4}, {ROWB}, v{T+4}")
I(f"v_and_b32 v{T+5}, 1, v{T+1}")
I(f"v_lshl_add_u32 v{T+4}, v{T+5}, 4, v{T+4}")
I(f"v_and_b32 v{T+6}, 2, v{T+1}")
I(f"v_lshl_add_u32 v{T+4}, v{T+6}, 2, v{T+4}")
I(f"v_and_b32 v{T+5}, 16, v{T+1}")
I(f"v_lshl_add_u32 v{T+4}, v{T+5}, 1, v{T+4}")
I(f"v_add_u32 v{T+4}, {VBASE}, v{T+4}")
I(f"v_and_b32 v{T+5}, 19, v{T+1}")
I(f"v_cmp_lt_u32 vcc, 16, v{T+5}")
I(f"v_lshlrev_b32 v{T+6}, 2, v{T+6}")
I(f"v_sub_u32 v{T+6}, {ONES+8}, v{T+6}")
I(f"v_cndmask_b32 v{VV}, v{T+4}, v{T+6}, vcc")
I(f"v_cndmask_b32 v{VINC}, 1, 0, vcc")
I(f"v_lshrrev_b32 v{T+4}, 1, v{T+2}")
I(f"v_lshlrev_b32 v{T+4}, 2, v{T+4}")
I(f"v_and_or_b32 v{T+4}, v{T+2}, 1, v{T+4}")
I(f"v_mul_u32_u24 v{T+4}, {4*ROWB}, v{T+4}")
I(f"v_add_u32 v{T+4}, {ONES}, v{T+4}")
for i in range(16):
    I(f"v_mov_b32 v{O+i}, 0")
I(f"v_mov_b32 v{T}, 0x3f80")
I(f"v_mov_b32 v{T+1}, 0")
I(f"v_mov_b32 v{T+2}, 0")
I(f"v_mov_b32 v{T+3}, 0")
I(f"ds_write_b128 v{T+4}, v[{T}:{T+3}]")
I(f"s_mov_b32 s{sTRIP}, 0")
I(f"s_mov_b32 s40, 0x{CSCALE:08x}")
if "bar0" in OPT: I("s_barrier")
dma()
dma()
stamp(2)
I("s_waitcnt vmcnt(4) lgkmcnt(0)")
stamp(4)
I("s_barrier")
stamp(5)
rstamp(16)
kreads(0, SB, SB+4, SB+8)
kreads(1)
vreads(0)
I("s_waitcnt vmcnt(3)")
qconv(QR); qconv(QR+1)
if PROF: I("s_waitcnt lgkmcnt(0)")
else: I("s_waitcnt lgkmcnt(13)")
I("s_waitcnt vmcnt(2)")
stamp(3)
I(mf_c(SA, SB+8, "0"))
for i in range(4): qconv(QM+i)
I("s_nop 1")
I(mf_a(SA, SB, f"v[{SA}:{SA+15}]"))
I(mf_a(SA+16, SB+4, f"v[{SA+16}:{SA+31}]"))
I("s_nop 3")
I("s_branch L_ENTRY")
emit(f".p2align {ALIGN}")
for i in range(PADN): I("s_nop 0")
emit("L_LOOP:")
for p in range(NSTEP):
    emit(f"; ---- step {p}")
    if p & 1:
        I(f"s_bitcmp1_b32 s{sMASK}, {p}")
        I(f"s_cbranch_scc0 L_B{p}")
        I("s_waitcnt vmcnt(1)")
        I("s_barrier")
        emit(f"L_B{p}:")
    vreads(p) if p == 3 else None
    if p == 3:
        I(f"s_cmp_eq_u32 s{sTRIP}, 7")
        I("s_cbranch_scc1 L_LAST")
    kreads((p + 1) % NSTEP)
    vreads(p) if p != 3 else None
    if p == 0: emit("L_ENTRY:")
    I(f"s_cmp_ge_u32 s{sSOFF}, {HEADB}")
    I(f"s_cbranch_scc1 L_ND{p}")
    dma()
    emit(f"L_ND{p}:")
    if p == 1:
        I(f"s_cmp_lg_u32 s{sTRIP}, 4")
        I("s_cbranch_scc1 L_NT")
        I(f"buffer_load_dword v{VDUM}, off, s[20:23], s{sQOFF}")
        emit("L_NT:")
    if p == 3:
        I(f"s_cmp_ge_u32 m0, s{sLIM}")
        I(f"s_cselect_b32 s41, {VRING}, 0")
        I("s_sub_u32 m0, m0, s41")
        I(f"s_lshr_b32 s{sMASK}, s{sMASK}, {NSTEP}")
        I(f"s_movk_i32 s{sVINC}, {TRIPB}")
        I(f"s_cmp_eq_u32 s{sTRIP}, 5")
        I(f"s_cselect_b32 s{sVINC}, {TRIPB - VRING}, s{sVINC}")
        if PROF:
            for t in range(3):
                I(f"s_cmp_lg_u32 s{sTRIP}, {2*t+1}")
                I(f"s_cbranch_scc1 L_PS{t}")
                stamp(10+t)
                rstamp(13+t)
                emit(f"L_PS{t}:")
        I(f"s_add_u32 s{sTRIP}, s{sTRIP}, 1")
    I("s_waitcnt lgkmcnt(0)")
    if not (p & 1):
        I(f"s_bitcmp1_b32 s{sMASK}, {p}")
        I(f"s_cbranch_scc0 L_B{p}")
        I("s_waitcnt vmcnt(1)")
        I("s_barrier")
        emit(f"L_B{p}:")
    extra = None
    if p == NSTEP - 2:
        extra = [f"v_add_u32 v{VKM}, {TRIPB}, v{VKM}", f"v_add_u32 v{VKR}, {TRIPB}, v{VKR}"]
    if p == NSTEP - 1:
        extra = [f"v_mad_i32_i24 v{VV}, v{VINC}, s{sVINC}, v{VV}"]
    burst(p & 1, extra)
I("s_branch L_LOOP")
emit("L_LAST:")
I("s_waitcnt lgkmcnt(0)")
burst(1, None, last=True)
stamp(6)
rstamp(17)
I(f"s_mov_b32 s40, 0x71800000")
I("s_nop 9")
emit("L_FIN:")
I(f"v_rcp_f32 v{T}, v{O+12}")
I(f"v_cmp_le_f32 vcc, 1.0, v{O+12}")
for i in range(4):
    I(f"v_pk_mul_f32 v[{O+2*i}:{O+2*i+1}], v[{O+2*i}:{O+2*i+1}], v[{T}:{T+1}] op_sel_hi:[1,0]")
for i in range(4):
    I(f"v_cvt_pk_bf16_f32 v{SA+i}, v{O+2*i}, v{O+2*i+1}")
I(f"buffer_store_dwordx4 v[{SA}:{SA+3}], v{VQ}, s[20:23], 0 offen {STFLAG}")
for i in range(4, 6):
    I(f"v_pk_mul_f32 v[{O+2*i}:{O+2*i+1}], v[{O+2*i}:{O+2*i+1}], v[{T}:{T+1}] op_sel_hi:[1,0]")
for i in range(4, 6):
    I(f"v_cvt_pk_bf16_f32 v{SA+i}, v{O+2*i}, v{O+2*i+1}")
I("s_mov_b32 exec_hi, 0")
I(f"buffer_store_dwordx2 v[{SA+4}:{SA+5}], v{VQ}, s[20:23], 0 offen offset:32 {STFLAG}")
I("s_mov_b32 exec_hi, -1")
I(f"s_cmp_eq_u32 s{sTRIP}, 9")
I("s_cbranch_scc1 L_DONE")
I(f"v_cmp_ge_f32 s[42:43], s40, v{O+12}")
I(f"v_dot2_f32_bf16 v{T+2}, v{SA}, 0, 0")
for i in range(1, 6):
    I(f"v_dot2_f32_bf16 v{T+2}, v{SA+i}, 0, v{T+2}")
I("s_and_b64 vcc, vcc, s[42:43]")
I("s_nop 1")
I(f"v_cmp_eq_f32 s[42:43], 0, v{T+2}")
I("s_nop 0")
I("s_and_b64 vcc, vcc, s[42:43]")
I("s_cmp_eq_u64 vcc, -1")
I("s_cbranch_scc0 L_FALLBACK")
emit("L_DONE:")
if PROF:
    I("s_waitcnt vmcnt(0)")
    stamp(7)
    rstamp(9)
    I("s_mov_b32 s62, 0x10000000")
    I("s_mov_b32 s63, 0x00020000")
    I("s_lshl_b32 s40, s2, 3")
    I(f"s_add_u32 s40, s40, s{sWAVE}")
    I("s_lshl_b32 s40, s40, 7")
    I("s_getreg_b32 s41, hwreg(HW_REG_XCC_ID)")
    I("s_getreg_b32 s42, hwreg(HW_REG_HW_ID)")
    I("s_mov_b64 exec, 1")
    I("v_mov_b32 v1, s40")
    I("s_waitcnt lgkmcnt(0)")
    for i in range(18):
        I(f"v_mov_b32 v2, s{64+2*i}")
        I(f"buffer_store_dword v2, v1, s[60:63], 0 offen offset:{4*i}")
    I(f"v_mov_b32 v2, s41")
    I(f"buffer_store_dword v2, v1, s[60:63], 0 offen offset:120")
    I(f"v_mov_b32 v2, s42")
    I(f"buffer_store_dword v2, v1, s[60:63], 0 offen offset:124")
emit("L_END:")
I("s_endpgm")

emit("L_FALLBACK:")
I("s_waitcnt vmcnt(0)")
I(f"s_mov_b32 s{sTRIP}, 9")
I("s_mov_b32 s24, s6")
I("s_mov_b32 s25, s7")
I(f"s_mov_b32 s26, {TOTB}")
I("s_mov_b32 s27, 0x00020000")
I("s_mov_b32 s28, s8")
I("s_mov_b32 s29, s9")
I(f"s_mov_b32 s30, {TOTB}")
I("s_mov_b32 s31, 0x00020000")
I(f"v_mbcnt_lo_u32_b32 v{T+1}, -1, 0")
I(f"v_mbcnt_hi_u32_b32 v{T+1}, -1, v{T+1}")
I(f"v_and_b32 v{T+2}, 31, v{T+1}")
I(f"v_lshrrev_b32 v{T+3}, 5, v{T+1}")
I(f"v_mul_u32_u24 v{VKM}, {ROWB}, v{T+2}")
I(f"v_lshl_add_u32 v{VKM}, v{T+3}, 4, v{VKM}")
I(f"v_add_u32 v{VKM}, s{sHEADOFF}, v{VKM}")
I(f"v_mul_u32_u24 v{VKR}, {ROWB}, v{T+1}")
I(f"v_add_u32 v{VKR}, s{sHEADOFF}, v{VKR}")
I(f"v_mul_u32_u24 v{VV}, {8*ROWB}, v{T+3}")
I(f"v_bfe_u32 v{T+4}, v{T+2}, 2, 1")
I(f"v_lshl_add_u32 v{VV}, v{T+4}, 4, v{VV}")
I(f"v_bfe_u32 v{T+4}, v{T+2}, 3, 1")
I(f"v_lshl_add_u32 v{VV}, v{T+4}, 3, v{VV}")
I(f"v_bfe_u32 v{T+4}, v{T+2}, 4, 1")
I(f"v_lshl_add_u32 v{VV}, v{T+4}, 5, v{VV}")
I(f"v_and_b32 v{T+4}, 3, v{T+2}")
I(f"v_lshl_add_u32 v{VV}, v{T+4}, 1, v{VV}")
I(f"v_add_u32 v{VV}, s{sHEADOFF}, v{VV}")
I(f"v_cmp_gt_u32 s[44:45], 20, v{T+2}")
for i in range(16):
    I(f"v_mov_b32 v{V0+i}, 0x3f803f80")
    I(f"v_mov_b32 v{O+i}, 0")
I(f"v_mov_b32 v{T+5}, 0xff800000")
def fb_qk():
    I(f"buffer_load_dwordx4 v[{KA}:{KA+3}], v{VKM}, s[24:27], s48 offen")
    I(f"buffer_load_dwordx4 v[{KB_}:{KB_+3}], v{VKM}, s[24:27], s48 offen offset:{32*ROWB}")
    I(f"buffer_load_dwordx2 v[{KR}:{KR+1}], v{VKR}, s[24:27], s48 offen offset:32")
    I("s_waitcnt vmcnt(0)")
    I(mf_a(SA)); I(mf_a(SA+16, KB_))
    I("s_nop 9")
    I(mf_c(SA))
    I("s_nop 15")
    I("s_nop 4")
I("s_mov_b32 s48, 0")
emit("L_FB_MAX:")
fb_qk()
for i in range(16):
    I(f"v_max3_f32 v{T+5}, v{SA+2*i}, v{SA+2*i+1}, v{T+5}")
I(f"s_add_u32 s48, s48, {BLK}")
I(f"s_cmp_lt_u32 s48, {HEADB}")
I("s_cbranch_scc1 L_FB_MAX")
I(f"v_mov_b32 v{T+6}, v{T+5}")
I("s_nop 1")
I(f"v_permlane32_swap_b32 v{T+5}, v{T+6}")
I("s_nop 1")
I(f"v_max_f32 v{T+5}, v{T+5}, v{T+6}")
I("s_mov_b32 s48, 0")
emit("L_FB_PV:")
I("s_mov_b64 exec, s[44:45]")
for j in range(4):
    for t in range(8):
        I(f"buffer_load_ushort v{SB+8*j+t}, v{VV}, s[28:31], s48 offen offset:{(16*j+t)*ROWB}")
I("s_waitcnt vmcnt(0)")
for i in range(16):
    I(f"v_lshl_or_b32 v{V0+i}, v{SB+2*i+1}, 16, v{SB+2*i}")
I("s_mov_b64 exec, -1")
fb_qk()
for i in range(32):
    I(f"v_sub_f32 v{SA+i}, v{SA+i}, v{T+5}")
for i in range(32):
    I(f"v_exp_f32 v{SA+i}, v{SA+i}")
I("s_nop 1")
for j in range(4):
    I(mf_s(SA, j))
I(f"s_add_u32 s48, s48, {BLK}")
I(f"s_cmp_lt_u32 s48, {HEADB}")
I("s_cbranch_scc1 L_FB_PV")
I("s_nop 15")
I("s_branch L_FIN")

emit('.section .rodata,"a"')
emit(".p2align 6")
emit(f".amdhsa_kernel {NAME}_kernel")
emit(f"  .amdhsa_next_free_vgpr {NV}")
emit(f"  .amdhsa_next_free_sgpr {102 if PROF else 64}")
emit(f"  .amdhsa_accum_offset {NV}")
emit("  .amdhsa_group_segment_fixed_size 0")
emit("  .amdhsa_kernarg_size 48")
emit("  .amdhsa_user_sgpr_count 2")
emit("  .amdhsa_user_sgpr_kernarg_segment_ptr 1")
emit("  .amdhsa_system_sgpr_workgroup_id_x 1")
emit(".end_amdhsa_kernel")
path = sys.argv[1] if len(sys.argv) > 1 else f"cdna_kernels/{NAME}.s"
open(path, "w").write("\n".join(out) + "\n")
```

```python
import sys, struct, math, os

NAME = "standalone__fused_io_aware_attn__prompt"
H, S, D = 32, 2048, 20
ROWB = D * 2
HEADB = S * ROWB
TOTB = H * HEADB
VBASE = 81920
VRING = 61440
ONES = VBASE + VRING
BLK = 64 * ROWB
NSTEP = 4
TRIPB = NSTEP * BLK
LDS = ONES + TRIPB

OPT = set(os.environ.get("OPT", "").split(","))
PROF = os.environ.get("PROF", "") in ("1", "3")
PROF3 = os.environ.get("PROF", "") == "3"
ALIGN = int(os.environ.get("ALIGN", "6"))
PADN = int(os.environ.get("PADN", "0"))
STFLAG = os.environ.get("STFLAG", "")

def f32(x): return struct.unpack("<I", struct.pack("<f", x))[0]
CSCALE = f32(D ** -0.5 * math.log2(math.e))

SA, SB, O = 0, 32, 64
QM, QR = 80, 84
KA, KB_, KR = 86, 90, 94
V0 = 96
IDX, VKM, VKR, VV, VINC, VDUM, VDMA, VQ = 112, 113, 114, 115, 116, 117, 118, 119
T = 120
NV = 144 if "e16" in OPT else 128
sWAVE, sHEADOFF, sTRIP, sMASK, sSOFF, sISF, sLIM, sQOFF, sVINC = 33, 34, 35, 36, 37, 38, 39, 46, 47

out = []
def emit(s=""): out.append(s)
def I(s): out.append("    " + s)
def stamp(i):
    if PROF3:
        if i in (0, 5): I(f"s_memtime s[{64+2*(i//5)}:{65+2*(i//5)}]")
    elif PROF: I(f"s_memtime s[{64+2*i}:{65+2*i}]")
def rstamp(i):
    if PROF and not PROF3: I(f"s_memrealtime s[{64+2*i}:{65+2*i}]")
FINE = "fine" in OPT
def fs(k):
    if FINE: I(f"s_memtime s[{64+2*k}:{65+2*k}]")
def stepstamp(p):
    if PROF3: I("s_memtime s[56:57]")
def stepcopy(p):
    if PROF3:
        pp = (p - 1) % 4
        for t in range(1 if FINE else 4):
            tv = t + 1 if (pp == 3 or p == 3) else t
            k = 2 + 4*t + pp
            I(f"s_cmp_eq_u32 s{sTRIP}, {tv}")
            I(f"s_cselect_b32 s{64+2*k}, s56, s{64+2*k}")
def mf_a(N, K=KA, c="0"): return f"v_mfma_f32_32x32x16_bf16 v[{N}:{N+15}], v[{K}:{K+3}], v[{QM}:{QM+3}], {c}"
def mf_c(N, K=KR, c=None): return f"v_mfma_f32_32x32x4_2b_bf16 v[{N}:{N+31}], v[{K}:{K+1}], v[{QR}:{QR+1}], {c or f'v[{N}:{N+31}]'} blgp:1"
def mf_s(Sx, j): return f"v_smfmac_f32_32x32x32_bf16 v[{O}:{O+15}], v[{V0+4*j}:{V0+4*j+3}], v[{Sx+8*j}:{Sx+8*j+7}], v{IDX}"

def burst(par, extra=None, last=False):
    Sx = SA if par == 0 else SB
    N = SB if par == 0 else SA
    e = lambda i: f"v_exp_f32 v{Sx+i}, v{Sx+i}"
    a, b, c = mf_a(N), mf_a(N+16, KB_), mf_c(N)
    s = [mf_s(Sx, j) for j in range(4)]
    seq = [e(0), "s_setprio 1", e(1), e(2), e(3), e(4), a, e(5), e(6), e(7), b, e(8), e(9), e(10), s[0], e(11), e(12), e(13), c]
    seq += [e(i) for i in range(14, 22)] + [s[1], e(22), e(23), e(24), e(25), s[2]]
    seq += [e(i) for i in range(26, 32)]
    if "e16" in OPT:
        Q2 = 128; R2 = 136
        kf = [KA, KB_, V0, V0+4]
        qk = [f"v_mfma_f32_16x16x32_bf16 v[{N+4*i}:{N+4*i+3}], v[{kf[i%4]}:{kf[i%4]+3}], v[{Q2+4*(i//4)}:{Q2+4*(i//4)+3}], 0" for i in range(8)]
        pv = []
        for j in range(4):
            pv.append(f"v_smfmac_f32_16x16x64_bf16 v[{O+8*(j//2)}:{O+8*(j//2)+3}], v[{V0+8+4*(j%2)}:{V0+8+4*(j%2)+3}], v[{Sx+8*j}:{Sx+8*j+7}], v{IDX}")
            pv.append(f"v_smfmac_f32_16x16x64_bf16 v[{O+8*(j//2)+4}:{O+8*(j//2)+7}], v[{R2+4*(j%2)}:{R2+4*(j%2)+3}], v[{Sx+8*j}:{Sx+8*j+7}], v{IDX}")
        seq = [e(0), "s_setprio 1", e(1), e(2), qk[0], e(3), e(4), qk[1], e(5), e(6), qk[2], e(7), e(8), qk[3], e(9), e(10), pv[0], e(11), e(12), pv[1], e(13), e(14), qk[4], e(15), e(16), qk[5], e(17), e(18), pv[2], e(19), e(20), pv[3], e(21), e(22), qk[6], e(23), e(24), qk[7], e(25), e(26), pv[4], e(27), e(28), pv[5], e(29), e(30), e(31)]
        s[3] = pv[6] + "\n    " + pv[7]
        if "e16qk" in OPT:
            seq = [x for x in seq if x not in (pv[1], pv[3], pv[5])]
            seq = [mf_s(Sx, 0) if x == pv[0] else mf_s(Sx, 1) if x == pv[2] else mf_s(Sx, 2) if x == pv[4] else x for x in seq]
            s[3] = mf_s(Sx, 3)
    if last:
        seq = [x for x in seq if x not in (a, b, c)]
    if extra:
        k = seq.index(e(28))
        seq = seq[:k] + extra + seq[k:]
    seq += ["s_nop 1"]
    seq += [s[3], "s_setprio 2" if (last and "epi0" not in OPT) else "s_setprio 0"]
    for x in seq: I(x)

def kreads(blk, ka=KA, kb=KB_, kr=KR):
    o = blk * BLK
    I(f"ds_read_b64 v[{kr}:{kr+1}], v{VKR} offset:{o}")
    I(f"ds_read_b64 v[{ka}:{ka+1}], v{VKM} offset:{o}")
    I(f"ds_read_b64 v[{ka+2}:{ka+3}], v{VKM} offset:{o+8}")
    I(f"ds_read_b64 v[{kb}:{kb+1}], v{VKM} offset:{o+32*ROWB}")
    I(f"ds_read_b64 v[{kb+2}:{kb+3}], v{VKM} offset:{o+32*ROWB+8}")
def voff(blk, j): return blk * BLK + ROWB * (16 * (j // 2) + 4 * (j % 2))
def vreads(blk):
    for j in range(8):
        I(f"ds_read_b64_tr_b16 v[{V0+2*j}:{V0+2*j+1}], v{VV} offset:{voff(blk, j)}")
def dma():
    I(f"buffer_load_dwordx4 v{VDMA}, s[16:19], s{sSOFF} offen lds")
    I("s_add_u32 m0, m0, 4096")
    I(f"s_add_u32 s{sSOFF}, s{sSOFF}, 4096")
def qconv(r):
    I(f"v_lshlrev_b32 v{T}, 16, v{r}")
    I(f"v_and_b32 v{T+1}, 0xffff0000, v{r}")
    I(f"v_mul_f32 v{T}, s40, v{T}")
    I(f"v_mul_f32 v{T+1}, s40, v{T+1}")
    I(f"v_cvt_pk_bf16_f32 v{r}, v{T}, v{T+1}")

hdr = open("cdna_kernels/%s.s.ref" % NAME).read().split("; Override")[0]
emit(hdr.rstrip())
emit("; Override launch geometry by editing the next line.")
emit(f"; @launch grid=(256,1,1) block=(512,1,1) lds={LDS}")
emit(""";
""")
emit('.amdgcn_target "amdgcn-amd-amdhsa--gfx950"')
emit(".text")
emit(f".globl {NAME}_kernel")
emit(".p2align 12")
emit(".p2align 8")
emit(f".type {NAME}_kernel,@function")
emit(f"{NAME}_kernel:")
if "twice" in OPT:
    I("s_mov_b32 s55, 0")
    emit("L_START:")
rstamp(8)
stamp(0)
I("s_load_dwordx8 s[4:11], s[0:1], 0")
if PROF: I("s_load_dwordx2 s[60:61], s[0:1], 40")
I("s_cmp_ge_u32 s2, 256")
I("s_cbranch_scc1 L_END")
I(f"v_lshrrev_b32 v{T}, 6, v0")
I(f"v_and_b32 v{T+1}, 63, v0")
I(f"v_readfirstlane_b32 s{sWAVE}, v{T}")
I("s_and_b32 s40, s2, 7")
I("s_lshl_b32 s40, s40, 2")
I("s_lshr_b32 s41, s2, 6")
I("s_add_u32 s40, s40, s41")
I(f"s_mul_i32 s{sHEADOFF}, s40, {HEADB}")
I("s_and_b32 s41, s2, 0x38")
I(f"s_add_u32 s41, s41, s{sWAVE}")
I(f"s_mul_i32 s41, s41, {32*ROWB}")
I(f"s_add_u32 s{sQOFF}, s41, s{sHEADOFF}")
I(f"v_and_b32 v{T+2}, 31, v{T+1}")
I(f"v_lshrrev_b32 v{T+3}, 5, v{T+1}")
I(f"v_mul_u32_u24 v{VKM}, {ROWB}, v{T+2}")
I(f"v_lshl_add_u32 v{VKM}, v{T+3}, 4, v{VKM}")
I(f"v_add_u32 v{VQ}, s{sQOFF}, v{VKM}")
I(f"s_lshr_b32 s{sISF}, s{sWAVE}, 2")
I(f"s_sub_u32 s42, s{sWAVE}, s{sISF}")
I("s_and_b32 s42, s42, 3")
I("s_lshl_b32 s42, s42, 10")
I(f"s_add_u32 s43, s42, s{sHEADOFF}")
I(f"v_lshl_add_u32 v{VDMA}, v{T+1}, 4, s43")
I(f"s_mul_i32 s43, s{sISF}, {VBASE}")
I("s_add_u32 s43, s43, s42")
I(f"s_mov_b32 s14, {TOTB}")
I("s_mov_b32 s15, 0x00020000")
I("s_mov_b32 s18, s14")
I("s_mov_b32 s19, s15")
I(f"s_mov_b32 s{sSOFF}, 0")
I("s_movk_i32 m0, 4096")
maskL = sum(1 << b for b in (1, 3, 7, 11, 19))
I(f"s_mov_b32 s{sMASK}, {maskL}")
I(f"s_lshr_b32 s{sMASK}, s{sMASK}, s{sISF}")
I(f"s_cmp_eq_u32 s{sISF}, 0")
I(f"s_mov_b32 s{sLIM}, {ONES}")
I("s_setprio 2")
I("s_cbranch_scc0 L_NOPRIO")
I("s_setprio 3")
I(f"s_mov_b32 s{sLIM}, -1")
emit("L_NOPRIO:")
I("s_mov_b32 s22, s14")
I("s_mov_b32 s23, s15")
def partA():
    I(f"v_mul_u32_u24 v{VKR}, {ROWB}, v{T+1}")
    I(f"v_add_u32 v{VKR}, 32, v{VKR}")
    I(f"v_lshrrev_b32 v{T+4}, 1, v{T+2}")
    I(f"v_lshlrev_b32 v{T+4}, 2, v{T+4}")
    I(f"v_and_or_b32 v{T+4}, v{T+2}, 1, v{T+4}")
    I(f"v_mul_u32_u24 v{T+4}, {4*ROWB}, v{T+4}")
    I(f"v_add_u32 v{T+4}, {ONES}, v{T+4}")
    I(f"v_mov_b32 v{SB}, 0x3f80")
    I(f"v_mov_b32 v{SB+1}, 0")
    I(f"v_mov_b64 v[{SB+2}:{SB+3}], 0")
    I(f"ds_write_b128 v{T+4}, v[{SB}:{SB+3}]")
if "lateA" not in OPT: partA()
I(f"s_cmp_eq_u32 s{sWAVE}, 4")
I("s_waitcnt lgkmcnt(0)")
stamp(1)
I("s_mov_b32 s16, s6")
I("s_mov_b32 s17, s7")
I("s_cbranch_scc0 L_NOK4")
I("s_movk_i32 s44, 1024")
I(f"buffer_load_dwordx4 v{VDMA}, s[16:19], s44 offen lds")
emit("L_NOK4:")
I(f"s_cmp_eq_u32 s{sISF}, 0")
I("s_mov_b32 m0, s43")
I("s_cselect_b32 s16, s6, s8")
I("s_cselect_b32 s17, s7, s9")
dma()
I("s_mov_b32 s12, s4")
I("s_mov_b32 s13, s5")
if "nobar" not in OPT: I("s_barrier")
I(f"buffer_load_dwordx2 v[{QR}:{QR+1}], v{VQ}, s[12:15], 0 offen offset:32")
I(f"buffer_load_dwordx4 v[{QM}:{QM+3}], v{VQ}, s[12:15], 0 offen")
if "nobar2" not in OPT: I("s_barrier")
dma()
dma()
if "lateA" in OPT: partA()
I("s_mov_b32 s20, s10")
I("s_mov_b32 s21, s11")
I(f"v_mov_b32 v{IDX}, 0xdddddddd")
I(f"v_bfe_u32 v{T+4}, v{T+1}, 2, 2")
I(f"v_lshl_add_u32 v{T+4}, v{T+3}, 3, v{T+4}")
I(f"v_mul_u32_u24 v{T+4}, {ROWB}, v{T+4}")
I(f"v_and_b32 v{T+5}, 1, v{T+1}")
I(f"v_lshl_add_u32 v{T+4}, v{T+5}, 4, v{T+4}")
I(f"v_and_b32 v{T+6}, 2, v{T+1}")
I(f"v_lshl_add_u32 v{T+4}, v{T+6}, 2, v{T+4}")
I(f"v_and_b32 v{T+5}, 16, v{T+1}")
I(f"v_lshl_add_u32 v{T+4}, v{T+5}, 1, v{T+4}")
I(f"v_add_u32 v{T+4}, {VBASE}, v{T+4}")
I(f"v_and_b32 v{T+5}, 19, v{T+1}")
I(f"v_cmp_lt_u32 vcc, 16, v{T+5}")
I(f"v_lshlrev_b32 v{T+6}, 2, v{T+6}")
I(f"v_sub_u32 v{T+6}, {ONES+8}, v{T+6}")
I(f"v_cndmask_b32 v{VV}, v{T+4}, v{T+6}, vcc")
I(f"v_cndmask_b32 v{VINC}, 1, 0, vcc")
for i in range(8):
    I(f"v_mov_b64 v[{O+2*i}:{O+2*i+1}], 0")
I(f"s_mov_b32 s{sTRIP}, 0")
I(f"s_mov_b32 s40, 0x{CSCALE:08x}")
dma()
if "arr" in OPT:
    NX = int(os.environ.get("NX", "0"))
    for i in range(NX): dma()
    I("s_memtime s[66:67]")
    for i in range(6 + NX):
        I(f"s_waitcnt vmcnt({5 + NX - i})")
        I(f"s_memtime s[{68+2*i}:{69+2*i}]")
    I("s_branch L_DONE")
stamp(2)
I("s_waitcnt vmcnt(5) lgkmcnt(0)")
stamp(4)
I("s_barrier")
stamp(5)
if PROF3: I("s_waitcnt lgkmcnt(0)")
rstamp(16)
kreads(0, SB, SB+4, SB+8)
if "rdfirst" in OPT:
    kreads(1); vreads(0)
fs(6)
I("s_waitcnt vmcnt(4)")
fs(7)
qconv(QR); qconv(QR+1)
fs(8)
if "rdfirst" not in OPT: kreads(1)
I("s_waitcnt lgkmcnt(%d)" % (0 if (PROF and not PROF3) else (13 if "rdfirst" in OPT else 9)))
if "rdfirst" in OPT: I("s_nop 0")
fs(9)
I(mf_c(SA, SB+8, "0"))
if "rdfirst" not in OPT: vreads(0)
fs(10)
I("s_waitcnt vmcnt(3)")
stamp(3)
for i in range(4): qconv(QM+i)
fs(11)
I("s_waitcnt lgkmcnt(%d)" % (0 if (PROF and not PROF3) else 13))
I(f"s_cmp_eq_u32 s{sISF}, 0")
I(mf_a(SA, SB, f"v[{SA}:{SA+15}]"))
I(mf_a(SA+16, SB+4, f"v[{SA+16}:{SA+31}]"))
fs(12)
I("s_cbranch_scc1 L_KEEP")
I("s_setprio 0")
emit("L_KEEP:")
if "e16" in OPT:
    I("s_waitcnt lgkmcnt(0)")
    for i in range(4):
        I(f"v_mov_b32 v{128+i}, v{QM+i}"); I(f"v_mov_b32 v{132+i}, v{QM+(i+1)%4}")
    for i in range(8):
        I(f"v_mov_b32 v{136+i}, 0")
    I("s_mov_b32 exec_lo, 0"); I("s_mov_b32 exec_hi, 0xffff0000")
    for i in range(8): I(f"v_mov_b32 v{128+i}, 0")
    I("s_mov_b32 exec_hi, 0xffff")
    for i in (2, 3, 6, 7): I(f"v_mov_b32 v{128+i}, 0")
    I("s_mov_b32 exec_lo, 0x001f001f"); I("s_mov_b32 exec_hi, 0x001f001f")
    for i in range(8): I(f"v_mov_b32 v{136+i}, v{KA+i}")
    I("s_mov_b64 exec, -1")
    I(f"v_and_b32 v{VV}, 0x3f8, v{VDMA}"); I(f"v_add_u32 v{VV}, {VBASE}, v{VV}"); I(f"v_mov_b32 v{VINC}, 1")
I("s_nop 2")
I("s_branch L_ENTRY")
emit(f".p2align {ALIGN}")
for i in range(PADN): I("s_nop 0")
emit("L_LOOP:")
for p in range(NSTEP):
    emit(f"; ---- step {p}")
    if p & 1:
        I(f"s_bitcmp1_b32 s{sMASK}, {p}")
        I(f"s_cbranch_scc0 L_B{p}")
        I("s_waitcnt vmcnt(2)")
        I("s_barrier")
        emit(f"L_B{p}:")
    vreads(p) if p == 3 else None
    if p == 3:
        I(f"s_cmp_eq_u32 s{sTRIP}, 7")
        I("s_cbranch_scc1 L_LAST")
    kreads((p + 1) % NSTEP)
    vreads(p) if p != 3 else None
    if p == 0: emit("L_ENTRY:")
    I(f"s_cmp_ge_u32 s{sSOFF}, {HEADB}")
    I(f"s_cbranch_scc1 L_ND{p}")
    dma()
    emit(f"L_ND{p}:")
    if p == 2:
        I(f"s_cmp_lg_u32 s{sTRIP}, 4")
        I("s_cbranch_scc1 L_NT")
        I("s_waitcnt vmcnt(0)")
        I(f"buffer_load_dword v{VDUM}, off, s[20:23], s{sQOFF}")
        emit("L_NT:")
        I(f"s_cmp_ge_u32 m0, s{sLIM}")
        I(f"s_cselect_b32 s41, {VRING}, 0")
        I("s_sub_u32 m0, m0, s41")
    if p == 3:
        I(f"s_lshr_b32 s{sMASK}, s{sMASK}, {NSTEP}")
        I(f"s_movk_i32 s{sVINC}, {TRIPB}")
        I(f"s_cmp_eq_u32 s{sTRIP}, 5")
        I(f"s_cselect_b32 s{sVINC}, {TRIPB - VRING}, s{sVINC}")
        if PROF:
            for t in range(3):
                I(f"s_cmp_lg_u32 s{sTRIP}, {2*t+1}")
                I(f"s_cbranch_scc1 L_PS{t}")
                stamp(10+t)
                rstamp(13+t)
                emit(f"L_PS{t}:")
        I(f"s_add_u32 s{sTRIP}, s{sTRIP}, 1")
    I("s_waitcnt lgkmcnt(0)")
    stepcopy(p)
    if not (p & 1):
        I(f"s_bitcmp1_b32 s{sMASK}, {p}")
        I(f"s_cbranch_scc0 L_B{p}")
        I("s_waitcnt vmcnt(2)")
        I("s_barrier")
        emit(f"L_B{p}:")
    if FINE and p == 0:
        I("s_memtime s[58:59]")
    if FINE and p == 1:
        I(f"s_cmp_eq_u32 s{sTRIP}, 0")
        I(f"s_cselect_b32 s{64+2*13}, s58, s{64+2*13}")
    extra = None
    if p == NSTEP - 2:
        extra = [f"v_add_u32 v{VKM}, {TRIPB}, v{VKM}", f"v_add_u32 v{VKR}, {TRIPB}, v{VKR}"]
    if p == NSTEP - 1:
        extra = [f"v_mad_i32_i24 v{VV}, v{VINC}, s{sVINC}, v{VV}"]
    burst(p & 1, extra)
    stepstamp(p)
I("s_branch L_LOOP")
emit("L_LAST:")
I("s_waitcnt lgkmcnt(0)")
burst(1, None, last=True)
stamp(6)
rstamp(17)
I(f"s_mov_b32 s40, 0x71800000")
I("s_nop 9")
emit("L_FIN:")
I(f"v_rcp_f32 v{T}, v{O+12}")
I(f"v_cmp_le_f32 vcc, 1.0, v{O+12}")
for i in range(4):
    I(f"v_pk_mul_f32 v[{O+2*i}:{O+2*i+1}], v[{O+2*i}:{O+2*i+1}], v[{T}:{T+1}] op_sel_hi:[1,0]")
for i in range(4):
    I(f"v_cvt_pk_bf16_f32 v{SA+i}, v{O+2*i}, v{O+2*i+1}")
I(f"buffer_store_dwordx4 v[{SA}:{SA+3}], v{VQ}, s[20:23], 0 offen {STFLAG}")
for i in range(4, 6):
    I(f"v_pk_mul_f32 v[{O+2*i}:{O+2*i+1}], v[{O+2*i}:{O+2*i+1}], v[{T}:{T+1}] op_sel_hi:[1,0]")
for i in range(4, 6):
    I(f"v_cvt_pk_bf16_f32 v{SA+i}, v{O+2*i}, v{O+2*i+1}")
I("s_mov_b32 exec_hi, 0")
I(f"buffer_store_dwordx2 v[{SA+4}:{SA+5}], v{VQ}, s[20:23], 0 offen offset:32 {STFLAG}")
I("s_mov_b32 exec_hi, -1")
I(f"s_cmp_eq_u32 s{sTRIP}, 9")
I("s_cbranch_scc1 L_DONE")
I(f"v_cmp_ge_f32 s[42:43], s40, v{O+12}")
I(f"v_dot2_f32_bf16 v{T+2}, v{SA}, 0, 0")
for i in range(1, 6):
    I(f"v_dot2_f32_bf16 v{T+2}, v{SA+i}, 0, v{T+2}")
I("s_and_b64 vcc, vcc, s[42:43]")
I("s_nop 1")
I(f"v_cmp_eq_f32 s[42:43], 0, v{T+2}")
I("s_nop 0")
I("s_and_b64 vcc, vcc, s[42:43]")
I("s_cmp_eq_u64 vcc, -1")
if "e16" not in OPT and not FINE: I("s_cbranch_scc0 L_FALLBACK")
emit("L_DONE:")
if PROF:
    I("s_waitcnt vmcnt(0)")
    stamp(7)
    rstamp(9)
    I("s_mov_b32 s62, 0x10000000")
    I("s_mov_b32 s63, 0x00020000")
    I("s_lshl_b32 s40, s2, 3")
    I(f"s_add_u32 s40, s40, s{sWAVE}")
    I("s_lshl_b32 s40, s40, 7")
    if "twice" in OPT:
        I("s_lshl_b32 s41, s55, 18")
        I("s_add_u32 s40, s40, s41")
    I("s_getreg_b32 s41, hwreg(HW_REG_XCC_ID)")
    I("s_getreg_b32 s42, hwreg(HW_REG_HW_ID)")
    I("s_mov_b64 exec, 1")
    I("v_mov_b32 v1, s40")
    I("s_waitcnt lgkmcnt(0)")
    for i in range(18):
        I(f"v_mov_b32 v2, s{64+2*i}")
        I(f"buffer_store_dword v2, v1, s[60:63], 0 offen offset:{4*i}")
    I(f"v_mov_b32 v2, s41")
    I(f"buffer_store_dword v2, v1, s[60:63], 0 offen offset:120")
    I(f"v_mov_b32 v2, s42")
    I(f"buffer_store_dword v2, v1, s[60:63], 0 offen offset:124")
if "twice" in OPT:
    I("s_add_u32 s55, s55, 1")
    I("s_cmp_ge_u32 s55, %s" % os.environ.get("NPASS", "2"))
    I("s_cbranch_scc1 L_END")
    I("s_waitcnt vmcnt(0) lgkmcnt(0)")
    I("s_barrier")
    I("s_mov_b64 exec, -1")
    I("v_mbcnt_lo_u32_b32 v0, -1, 0")
    I("v_mbcnt_hi_u32_b32 v0, -1, v0")
    I(f"s_lshl_b32 s40, s{sWAVE}, 6")
    I("v_add_u32 v0, s40, v0")
    I("s_branch L_START")
emit("L_END:")
I("s_endpgm")

emit("L_FALLBACK:")
I("s_waitcnt vmcnt(0)")
I(f"s_mov_b32 s{sTRIP}, 9")
I("s_mov_b32 s24, s6")
I("s_mov_b32 s25, s7")
I(f"s_mov_b32 s26, {TOTB}")
I("s_mov_b32 s27, 0x00020000")
I("s_mov_b32 s28, s8")
I("s_mov_b32 s29, s9")
I(f"s_mov_b32 s30, {TOTB}")
I("s_mov_b32 s31, 0x00020000")
I(f"v_mbcnt_lo_u32_b32 v{T+1}, -1, 0")
I(f"v_mbcnt_hi_u32_b32 v{T+1}, -1, v{T+1}")
I(f"v_and_b32 v{T+2}, 31, v{T+1}")
I(f"v_lshrrev_b32 v{T+3}, 5, v{T+1}")
I(f"v_mul_u32_u24 v{VKM}, {ROWB}, v{T+2}")
I(f"v_lshl_add_u32 v{VKM}, v{T+3}, 4, v{VKM}")
I(f"v_add_u32 v{VKM}, s{sHEADOFF}, v{VKM}")
I(f"v_mul_u32_u24 v{VKR}, {ROWB}, v{T+1}")
I(f"v_add_u32 v{VKR}, s{sHEADOFF}, v{VKR}")
I(f"v_mul_u32_u24 v{VV}, {8*ROWB}, v{T+3}")
I(f"v_bfe_u32 v{T+4}, v{T+2}, 2, 1")
I(f"v_lshl_add_u32 v{VV}, v{T+4}, 4, v{VV}")
I(f"v_bfe_u32 v{T+4}, v{T+2}, 3, 1")
I(f"v_lshl_add_u32 v{VV}, v{T+4}, 3, v{VV}")
I(f"v_bfe_u32 v{T+4}, v{T+2}, 4, 1")
I(f"v_lshl_add_u32 v{VV}, v{T+4}, 5, v{VV}")
I(f"v_and_b32 v{T+4}, 3, v{T+2}")
I(f"v_lshl_add_u32 v{VV}, v{T+4}, 1, v{VV}")
I(f"v_add_u32 v{VV}, s{sHEADOFF}, v{VV}")
I(f"v_cmp_gt_u32 s[44:45], 20, v{T+2}")
for i in range(16):
    I(f"v_mov_b32 v{V0+i}, 0x3f803f80")
    I(f"v_mov_b32 v{O+i}, 0")
I(f"v_mov_b32 v{T+5}, 0xff800000")
def fb_qk():
    I(f"buffer_load_dwordx4 v[{KA}:{KA+3}], v{VKM}, s[24:27], s48 offen")
    I(f"buffer_load_dwordx4 v[{KB_}:{KB_+3}], v{VKM}, s[24:27], s48 offen offset:{32*ROWB}")
    I(f"buffer_load_dwordx2 v[{KR}:{KR+1}], v{VKR}, s[24:27], s48 offen offset:32")
    I("s_waitcnt vmcnt(0)")
    I(mf_a(SA)); I(mf_a(SA+16, KB_))
    I("s_nop 9")
    I(mf_c(SA))
    I("s_nop 15")
    I("s_nop 4")
I("s_mov_b32 s48, 0")
emit("L_FB_MAX:")
fb_qk()
for i in range(16):
    I(f"v_max3_f32 v{T+5}, v{SA+2*i}, v{SA+2*i+1}, v{T+5}")
I(f"s_add_u32 s48, s48, {BLK}")
I(f"s_cmp_lt_u32 s48, {HEADB}")
I("s_cbranch_scc1 L_FB_MAX")
I(f"v_mov_b32 v{T+6}, v{T+5}")
I("s_nop 1")
I(f"v_permlane32_swap_b32 v{T+5}, v{T+6}")
I("s_nop 1")
I(f"v_max_f32 v{T+5}, v{T+5}, v{T+6}")
I("s_mov_b32 s48, 0")
emit("L_FB_PV:")
I("s_mov_b64 exec, s[44:45]")
for j in range(4):
    for t in range(8):
        I(f"buffer_load_ushort v{SB+8*j+t}, v{VV}, s[28:31], s48 offen offset:{(16*j+t)*ROWB}")
I("s_waitcnt vmcnt(0)")
for i in range(16):
    I(f"v_lshl_or_b32 v{V0+i}, v{SB+2*i+1}, 16, v{SB+2*i}")
I("s_mov_b64 exec, -1")
fb_qk()
for i in range(32):
    I(f"v_sub_f32 v{SA+i}, v{SA+i}, v{T+5}")
for i in range(32):
    I(f"v_exp_f32 v{SA+i}, v{SA+i}")
I("s_nop 1")
for j in range(4):
    I(mf_s(SA, j))
I(f"s_add_u32 s48, s48, {BLK}")
I(f"s_cmp_lt_u32 s48, {HEADB}")
I("s_cbranch_scc1 L_FB_PV")
I("s_nop 15")
I("s_branch L_FIN")

emit('.section .rodata,"a"')
emit(".p2align 6")
emit(f".amdhsa_kernel {NAME}_kernel")
emit(f"  .amdhsa_next_free_vgpr {NV}")
emit(f"  .amdhsa_next_free_sgpr {102 if PROF else 64}")
emit(f"  .amdhsa_accum_offset {NV}")
emit("  .amdhsa_group_segment_fixed_size 0")
emit("  .amdhsa_kernarg_size 48")
emit("  .amdhsa_user_sgpr_count 2")
emit("  .amdhsa_user_sgpr_kernarg_segment_ptr 1")
emit("  .amdhsa_system_sgpr_workgroup_id_x 1")
emit(".end_amdhsa_kernel")
path = sys.argv[1] if len(sys.argv) > 1 else f"cdna_kernels/{NAME}.s"
open(path, "w").write("\n".join(out) + "\n")
```

```python
import sys, struct, math, os

NAME = "standalone__fused_io_aware_attn__prompt"
H, S, D = 32, 2048, 20
ROWB = D * 2
HEADB = S * ROWB
TOTB = H * HEADB
VBASE = 81920
VRING = 61440
ONES = VBASE + VRING
BLK = 64 * ROWB
NSTEP = 4
TRIPB = NSTEP * BLK
LDS = ONES + TRIPB

OPT = set(os.environ.get("OPT", "").split(","))
PROF = os.environ.get("PROF", "") == "4"
FINE = "fine" in OPT
STFLAG = os.environ.get("STFLAG", "")

def f32(x): return struct.unpack("<I", struct.pack("<f", x))[0]
CSCALE = f32(D ** -0.5 * math.log2(math.e))

SA, SB, O = 0, 32, 64
QM, QR = 80, 84
KA, KB_, KR = 86, 90, 94
V0 = 96
IDX, VKM, VKR, VV, VINC, VDUM, VDMA, VQ = 112, 113, 114, 115, 116, 117, 118, 119
T = 120
NV = 128
sWAVE, sHEADOFF, sTRIP, sMASK, sSOFF, sISF, sLIM, sQOFF, sVINC = 33, 34, 35, 36, 37, 38, 39, 46, 47

out = []
def emit(s=""): out.append(s)
def I(s): out.append("    " + s)
def stamp(i):
    if PROF: I(f"s_memtime s[{64+2*i}:{65+2*i}]")
def rstamp(i):
    if PROF: I(f"s_memrealtime s[{64+2*i}:{65+2*i}]")
def fs(k):
    if FINE: I(f"s_memtime s[{64+2*k}:{65+2*k}]")

def mf_a(N, K=KA, c="0"): return f"v_mfma_f32_32x32x16_bf16 v[{N}:{N+15}], v[{K}:{K+3}], v[{QM}:{QM+3}], {c}"
def mf_c(N, K=KR, c=None): return f"v_mfma_f32_32x32x4_2b_bf16 v[{N}:{N+31}], v[{K}:{K+1}], v[{QR}:{QR+1}], {c or f'v[{N}:{N+31}]'} blgp:1"
def mf_s(Sx, j): return f"v_smfmac_f32_32x32x32_bf16 v[{O}:{O+15}], v[{V0+4*j}:{V0+4*j+3}], v[{Sx+8*j}:{Sx+8*j+7}], v{IDX}"

def burst(par, extra=None, last=False, bar=False):
    Sx = SA if par == 0 else SB
    N = SB if par == 0 else SA
    e = lambda i: f"v_exp_f32 v{Sx+i}, v{Sx+i}"
    a, b, c = mf_a(N), mf_a(N+16, KB_), mf_c(N)
    s = [mf_s(Sx, j) for j in range(4)]
    seq = [e(0), "s_setprio 1", e(1), e(2), e(3), e(4), a, e(5), e(6), e(7), b, e(8), e(9), e(10), s[0], e(11), e(12), e(13), c]
    seq += [e(i) for i in range(14, 22)] + [s[1], e(22), e(23), e(24), e(25), s[2]]
    seq += [e(i) for i in range(26, 32)]
    if last:
        seq = [x for x in seq if x not in (a, b, c)]
    if extra:
        k = seq.index(e(28))
        seq = seq[:k] + extra + seq[k:]
    if bar:
        seq += ["s_waitcnt vmcnt(2)", "s_barrier"]
    else:
        seq += ["s_nop 1"]
    seq += [s[3], "s_setprio 2" if last else "s_setprio 0"]
    for x in seq: I(x)

def kreads(blk, ka=KA, kb=KB_, kr=KR):
    o = blk * BLK
    I(f"ds_read_b64 v[{kr}:{kr+1}], v{VKR} offset:{o}")
    I(f"ds_read_b64 v[{ka}:{ka+1}], v{VKM} offset:{o}")
    I(f"ds_read_b64 v[{ka+2}:{ka+3}], v{VKM} offset:{o+8}")
    I(f"ds_read_b64 v[{kb}:{kb+1}], v{VKM} offset:{o+32*ROWB}")
    I(f"ds_read_b64 v[{kb+2}:{kb+3}], v{VKM} offset:{o+32*ROWB+8}")
def voff(blk, j): return blk * BLK + ROWB * (16 * (j // 2) + 4 * (j % 2))
def vreads(blk):
    for j in range(8):
        I(f"ds_read_b64_tr_b16 v[{V0+2*j}:{V0+2*j+1}], v{VV} offset:{voff(blk, j)}")
def dma():
    I(f"buffer_load_dwordx4 v{VDMA}, s[16:19], s{sSOFF} offen lds")
    I("s_addk_i32 m0, 4096")
    I(f"s_addk_i32 s{sSOFF}, 4096")
def cdma(tag):
    I(f"s_cmp_ge_u32 s{sSOFF}, s45")
    I(f"s_cbranch_scc1 L_ND{tag}")
    dma()
    emit(f"L_ND{tag}:")
def qloads():
    I(f"buffer_load_dwordx2 v[{QR}:{QR+1}], v{VQ}, s[12:15], 0 offen offset:32")
    I(f"buffer_load_dwordx4 v[{QM}:{QM+3}], v{VQ}, s[12:15], 0 offen")
def qconv(regs):
    for i, r in enumerate(regs):
        I(f"v_lshlrev_b32 v{T+2*i}, 16, v{r}")
        I(f"v_and_b32 v{T+2*i+1}, s41, v{r}")
    for i in range(2*len(regs)):
        I(f"v_mul_f32 v{T+i}, s40, v{T+i}")
    for i, r in enumerate(regs):
        I(f"v_cvt_pk_bf16_f32 v{r}, v{T+2*i}, v{T+2*i+1}")

hdr = open("cdna_kernels/%s.s.ref" % NAME).read().split("; Override")[0]
emit(hdr.rstrip())
emit("; Override launch geometry by editing the next line.")
emit(f"; @launch grid=(256,1,1) block=(512,1,1) lds={LDS}")
emit(""";
""")
emit('.amdgcn_target "amdgcn-amd-amdhsa--gfx950"')
emit(".text")
emit(f".globl {NAME}_kernel")
emit(".p2align 12")
emit(".p2align 8")
emit(f".type {NAME}_kernel,@function")
emit(f"{NAME}_kernel:")
rstamp(8)
stamp(0)
I("s_load_dwordx4 s[4:7], s[0:1], 8")
I("s_load_dwordx2 s[12:13], s[0:1], 0")
I("s_load_dwordx2 s[20:21], s[0:1], 24")
if PROF: I("s_load_dwordx2 s[60:61], s[0:1], 40")
I(f"v_readfirstlane_b32 s{sWAVE}, v0")
I("s_cmp_ge_u32 s2, 256")
I("s_cbranch_scc1 L_END")
I(f"v_and_b32 v{T+1}, 63, v0")
I(f"v_and_b32 v{T+2}, 31, v0")
I(f"v_bfe_u32 v{T+3}, v0, 5, 1")
I(f"s_lshr_b32 s{sWAVE}, s{sWAVE}, 6")
I("s_and_b32 s40, s2, 7")
I("s_lshr_b32 s41, s2, 6")
I("s_lshl2_add_u32 s40, s40, s41")
I(f"s_mov_b32 s45, {HEADB}")
I(f"s_mul_i32 s{sHEADOFF}, s40, s45")
I("s_and_b32 s41, s2, 0x38")
I(f"s_add_u32 s41, s41, s{sWAVE}")
I(f"s_mulk_i32 s41, {32*ROWB}")
I(f"s_add_u32 s{sQOFF}, s41, s{sHEADOFF}")
I(f"v_mul_u32_u24 v{VKM}, {ROWB}, v{T+2}")
I(f"v_lshl_add_u32 v{VKM}, v{T+3}, 4, v{VKM}")
I(f"v_add_u32 v{VQ}, s{sQOFF}, v{VKM}")
I(f"v_lshl_add_u32 v{VDMA}, v{T+1}, 4, s{sHEADOFF}")
I(f"s_and_b32 s42, s{sWAVE}, 3")
I(f"s_lshl_b32 s{sSOFF}, s42, 10")
I(f"s_lshr_b32 s{sISF}, s{sWAVE}, 2")
I(f"s_mul_i32 s43, s{sISF}, s45")
I(f"s_add_u32 m0, s43, s{sSOFF}")
I(f"s_mov_b32 s14, {TOTB}")
I("s_mov_b32 s15, 0x00020000")
I("s_mov_b64 s[18:19], s[14:15]")
I("s_mov_b64 s[26:27], s[14:15]")
I(f"s_cmp_eq_u32 s{sWAVE}, 3")
I(f"s_cselect_b32 s44, 0x1000, s{sSOFF}")
I("s_cselect_b32 s43, 0, s45")
I("s_add_u32 s43, s43, s44")
I(f"s_mov_b32 s{sLIM}, {ONES}")
I(f"s_cmp_lg_u32 s{sISF}, 0")
I("s_cbranch_scc1 L_SETUP")
I("s_setprio 3")
I(f"s_cmp_eq_u32 s{sWAVE}, 3")
I("s_waitcnt lgkmcnt(0)")
fs(10)
I("s_mov_b64 s[16:17], s[4:5]")
I(f"buffer_load_dwordx4 v{VDMA}, s[16:19], s{sSOFF} offen lds")
I("s_cselect_b64 s[24:25], s[4:5], s[6:7]")
I("s_mov_b32 m0, s43")
I(f"s_addk_i32 s{sSOFF}, 4096")
I(f"buffer_load_dwordx4 v{VDMA}, s[24:27], s44 offen lds")
qloads()
fs(11)
I("s_barrier")
I(f"s_mov_b32 m0, s{sSOFF}")
I(f"s_mov_b32 s{sLIM}, -1")
if "ldelay" in OPT: I("s_setprio 0")
dma()
dma()
if "ldelay" in OPT: I("s_setprio 3")
emit("L_SETUP:")
maskB = sum(1 << t for t in (0, 1, 2, 4))
I(f"s_movk_i32 s{sMASK}, {maskB}")
I("s_mov_b64 s[22:23], s[14:15]")
I(f"v_mul_u32_u24 v{VKR}, {ROWB}, v{T+1}")
I(f"v_add_u32 v{VKR}, 32, v{VKR}")
I(f"v_lshrrev_b32 v{T+4}, 1, v{T+2}")
I(f"v_lshlrev_b32 v{T+4}, 2, v{T+4}")
I(f"v_and_or_b32 v{T+4}, v{T+2}, 1, v{T+4}")
I(f"v_mul_u32_u24 v{T+4}, {4*ROWB}, v{T+4}")
I(f"v_add_u32 v{T+4}, {ONES}, v{T+4}")
I(f"v_mov_b32 v{SB}, 0x3f80")
I(f"v_mov_b32 v{SB+1}, 0")
I(f"v_mov_b64 v[{SB+2}:{SB+3}], 0")
I(f"ds_write_b128 v{T+4}, v[{SB}:{SB+3}]")
I(f"v_mov_b32 v{IDX}, 0xdddddddd")
I(f"v_bfe_u32 v{T+4}, v{T+1}, 2, 2")
I(f"v_lshl_add_u32 v{T+4}, v{T+3}, 3, v{T+4}")
I(f"v_mul_u32_u24 v{T+4}, {ROWB}, v{T+4}")
I(f"v_and_b32 v{T+5}, 1, v{T+1}")
I(f"v_lshl_add_u32 v{T+4}, v{T+5}, 4, v{T+4}")
I(f"v_and_b32 v{T+6}, 2, v{T+1}")
I(f"v_lshl_add_u32 v{T+4}, v{T+6}, 2, v{T+4}")
I(f"v_and_b32 v{T+5}, 16, v{T+1}")
I(f"v_lshl_add_u32 v{T+4}, v{T+5}, 1, v{T+4}")
I(f"v_add_u32 v{T+4}, s45, v{T+4}")
I(f"v_and_b32 v{T+5}, 19, v{T+1}")
I(f"v_cmp_lt_u32 vcc, 16, v{T+5}")
I(f"v_lshlrev_b32 v{T+6}, 2, v{T+6}")
I(f"v_sub_u32 v{T+6}, {ONES+8}, v{T+6}")
I(f"v_cndmask_b32 v{VV}, v{T+4}, v{T+6}, vcc")
I(f"v_cndmask_b32 v{VINC}, 1, 0, vcc")
for i in range(8):
    I(f"v_mov_b64 v[{O+2*i}:{O+2*i+1}], 0")
I(f"s_mov_b32 s{sTRIP}, 0")
I(f"s_mov_b32 s40, 0x{CSCALE:08x}")
I("s_mov_b32 s41, 0xffff0000")
I(f"s_movk_i32 s48, {TRIPB}")
I(f"s_cmp_eq_u32 s{sISF}, 0")
I("s_cbranch_scc1 L_R1")
I("s_setprio 2")
I("s_waitcnt lgkmcnt(0)")
fs(10)
I("s_mov_b64 s[16:17], s[6:7]")
I("s_barrier")
dma()
qloads()
fs(11)
dma()
dma()
emit("L_R1:")
dma()
I(f"s_cmp_lg_u32 s{sISF}, 0")
I("s_waitcnt lgkmcnt(0)")
fs(12)
I("s_cbranch_scc1 L_B0")
I("s_waitcnt vmcnt(5)")
emit("L_B0:")
if PROF:
    stamp(4); I("s_waitcnt lgkmcnt(0)")
I("s_barrier")
kreads(0, SB, SB+4, SB+8)
fs(13)
I("s_waitcnt vmcnt(4)")
fs(14)
qconv([QR, QR+1])
I("s_waitcnt vmcnt(3) lgkmcnt(%d)" % (0 if FINE else 4))
I("s_nop 0")
I(mf_c(SA, SB+8, "0"))
qconv([QM, QM+1, QM+2, QM+3])
I(f"s_cmp_lg_u32 s{sISF}, 0")
I("s_waitcnt lgkmcnt(0)")
I(mf_a(SA, SB, f"v[{SA}:{SA+15}]"))
I("s_cbranch_scc1 L_FGO")
kreads(1)
I(mf_a(SA+16, SB+4, f"v[{SA+16}:{SA+31}]"))
def first_burst():
    Sx, N = SA, SB
    e = lambda i: f"v_exp_f32 v{Sx+i}, v{Sx+i}"
    vr = lambda j: f"ds_read_b64_tr_b16 v[{V0+2*j}:{V0+2*j+1}], v{VV} offset:{voff(0, j)}"
    a, b, c = mf_a(N), mf_a(N+16, KB_), mf_c(N)
    s = [mf_s(Sx, j) for j in range(4)]
    for j in range(5): I(vr(j))
    fs(15)
    seq = [e(0), "s_setprio 1", e(1), vr(5), e(2), vr(6), e(3), vr(7), e(4),
           f"buffer_load_dwordx4 v{VDMA}, s[16:19], s{sSOFF} offen lds", e(5), "s_addk_i32 m0, 4096", e(6), f"s_addk_i32 s{sSOFF}, 4096", e(7),
           "s_waitcnt lgkmcnt(0)", a, e(8), e(9), e(10), b, e(11), e(12), e(13), s[0], e(14), e(15), e(16), c]
    seq += [e(i) for i in range(17, 25)] + [s[1], e(25), e(26), e(27), s[2], e(28), e(29), e(30), e(31)]
    seq += ["s_waitcnt vmcnt(2)", "s_barrier", s[3], "s_setprio 0"]
    for x in seq: I(x)
first_burst()
fs(16)
I("s_branch L_OFF1")
emit("L_BAR2:")
I(f"s_cmp_lg_u32 s{sISF}, 0")
I("s_cbranch_scc1 L_FBAR2")
KADD = [f"v_add_u32 v{VKM}, s48, v{VKM}", f"v_add_u32 v{VKR}, s48, v{VKR}"]
burst(0, KADD, bar=True)
I("s_branch L_OFF3")
emit("L_FGO:")
I(mf_a(SA+16, SB+4, f"v[{SA+16}:{SA+31}]"))
I("s_setprio 0")
emit("L_LOOP:")
kreads(1); vreads(0)
cdma(0)
I(f"s_cmp_lg_u32 s{sTRIP}, 0")
I("s_cbranch_scc1 L_BURST0")
I("s_waitcnt vmcnt(3) lgkmcnt(0)")
fs(15)
I("s_barrier")
emit("L_BURST0:")
I("s_waitcnt lgkmcnt(0)")
burst(0)
emit("L_OFF1:")
kreads(2); vreads(1)
cdma(1)
I("s_waitcnt lgkmcnt(0)")
burst(1)
kreads(3); vreads(2)
cdma(2)
I(f"s_cmp_ge_u32 m0, s{sLIM}")
I(f"s_cselect_b32 s42, {VRING}, 0")
I("s_sub_u32 m0, m0, s42")
I(f"s_cmp_lg_u32 s{sTRIP}, 4")
I("s_cbranch_scc1 L_NT")
I("s_waitcnt vmcnt(0)")
if "notouch" not in OPT: I(f"buffer_load_dword v{VDUM}, off, s[20:23], s{sQOFF}")
emit("L_NT:")
I(f"s_bitcmp1_b32 s{sMASK}, s{sTRIP}")
I("s_waitcnt lgkmcnt(0)")
I("s_cbranch_scc1 L_BAR2")
I("s_branch L_BURST2")
emit("L_FBAR2:")
I("s_waitcnt vmcnt(2)")
I("s_barrier")
emit("L_BURST2:")
burst(0, KADD)
emit("L_OFF3:")
vreads(3)
I(f"s_cmp_eq_u32 s{sTRIP}, 7")
I("s_cbranch_scc1 L_LAST")
kreads(0)
cdma(3)
I(f"s_cmp_eq_u32 s{sTRIP}, 5")
I(f"s_cselect_b32 s{sVINC}, {TRIPB - VRING}, s48")
I(f"s_add_u32 s{sTRIP}, s{sTRIP}, 1")
I("s_waitcnt lgkmcnt(0)")
burst(1, [f"v_mad_i32_i24 v{VV}, v{VINC}, s{sVINC}, v{VV}"])
I("s_branch L_LOOP")
emit("L_LAST:")
I("s_waitcnt lgkmcnt(0)")
burst(1, None, last=True)
stamp(6)
rstamp(17)
I(f"s_mov_b32 s40, 0x71800000")
I("s_nop 9")
emit("L_FIN:")
I(f"v_rcp_f32 v{T}, v{O+12}")
I(f"v_cmp_le_f32 vcc, 1.0, v{O+12}")
def muls(r):
    for i in r:
        if "nopk" not in OPT:
            I(f"v_pk_mul_f32 v[{O+2*i}:{O+2*i+1}], v[{O+2*i}:{O+2*i+1}], v[{T}:{T+1}] op_sel_hi:[1,0]")
        else:
            I(f"v_mul_f32 v{O+2*i}, v{T}, v{O+2*i}"); I(f"v_mul_f32 v{O+2*i+1}, v{T}, v{O+2*i+1}")
muls(range(4))
for i in range(4):
    I(f"v_cvt_pk_bf16_f32 v{SA+i}, v{O+2*i}, v{O+2*i+1}")
I(f"buffer_store_dwordx4 v[{SA}:{SA+3}], v{VQ}, s[20:23], 0 offen {STFLAG}")
muls(range(4, 6))
for i in range(4, 6):
    I(f"v_cvt_pk_bf16_f32 v{SA+i}, v{O+2*i}, v{O+2*i+1}")
I("s_mov_b32 exec_hi, 0")
I(f"buffer_store_dwordx2 v[{SA+4}:{SA+5}], v{VQ}, s[20:23], 0 offen offset:32 {STFLAG}")
I("s_mov_b32 exec_hi, -1")
I("s_setprio 0")
I(f"s_cmp_eq_u32 s{sTRIP}, 9")
I("s_cbranch_scc1 L_DONE")
I(f"v_cmp_ge_f32 s[42:43], s40, v{O+12}")
I(f"v_dot2_f32_bf16 v{T+2}, v{SA}, 0, 0")
for i in range(1, 6):
    I(f"v_dot2_f32_bf16 v{T+2}, v{SA+i}, 0, v{T+2}")
I("s_and_b64 vcc, vcc, s[42:43]")
I("s_nop 1")
I(f"v_cmp_eq_f32 s[42:43], 0, v{T+2}")
I("s_nop 0")
I("s_and_b64 vcc, vcc, s[42:43]")
I("s_cmp_eq_u64 vcc, -1")
if not FINE: I("s_cbranch_scc0 L_FALLBACK")
emit("L_DONE:")
if PROF:
    I("s_waitcnt vmcnt(0)")
    stamp(7)
    rstamp(9)
    I("s_mov_b32 s62, 0x10000000")
    I("s_mov_b32 s63, 0x00020000")
    I("s_lshl_b32 s40, s2, 3")
    I(f"s_add_u32 s40, s40, s{sWAVE}")
    I("s_lshl_b32 s40, s40, 7")
    I("s_mov_b64 exec, 1")
    I("v_mov_b32 v1, s40")
    I("s_waitcnt lgkmcnt(0)")
    for i in range(18):
        I(f"v_mov_b32 v2, s{64+2*i}")
        I(f"buffer_store_dword v2, v1, s[60:63], 0 offen offset:{4*i}")
emit("L_END:")
I("s_endpgm")

emit("L_FALLBACK:")
I("s_waitcnt vmcnt(0)")
I(f"s_mov_b32 s{sTRIP}, 9")
I("s_mov_b64 s[24:25], s[4:5]")
I("s_mov_b64 s[26:27], s[14:15]")
I("s_mov_b64 s[28:29], s[6:7]")
I("s_mov_b64 s[30:31], s[14:15]")
I(f"v_mbcnt_lo_u32_b32 v{T+1}, -1, 0")
I(f"v_mbcnt_hi_u32_b32 v{T+1}, -1, v{T+1}")
I(f"v_and_b32 v{T+2}, 31, v{T+1}")
I(f"v_lshrrev_b32 v{T+3}, 5, v{T+1}")
I(f"v_mul_u32_u24 v{VKM}, {ROWB}, v{T+2}")
I(f"v_lshl_add_u32 v{VKM}, v{T+3}, 4, v{VKM}")
I(f"v_add_u32 v{VKM}, s{sHEADOFF}, v{VKM}")
I(f"v_mul_u32_u24 v{VKR}, {ROWB}, v{T+1}")
I(f"v_add_u32 v{VKR}, s{sHEADOFF}, v{VKR}")
I(f"v_mul_u32_u24 v{VV}, {8*ROWB}, v{T+3}")
I(f"v_bfe_u32 v{T+4}, v{T+2}, 2, 1")
I(f"v_lshl_add_u32 v{VV}, v{T+4}, 4, v{VV}")
I(f"v_bfe_u32 v{T+4}, v{T+2}, 3, 1")
I(f"v_lshl_add_u32 v{VV}, v{T+4}, 3, v{VV}")
I(f"v_bfe_u32 v{T+4}, v{T+2}, 4, 1")
I(f"v_lshl_add_u32 v{VV}, v{T+4}, 5, v{VV}")
I(f"v_and_b32 v{T+4}, 3, v{T+2}")
I(f"v_lshl_add_u32 v{VV}, v{T+4}, 1, v{VV}")
I(f"v_add_u32 v{VV}, s{sHEADOFF}, v{VV}")
I(f"v_cmp_gt_u32 s[44:45], 20, v{T+2}")
for i in range(16):
    I(f"v_mov_b32 v{V0+i}, 0x3f803f80")
    I(f"v_mov_b32 v{O+i}, 0")
I(f"v_mov_b32 v{T+5}, 0xff800000")
def fb_qk():
    I(f"buffer_load_dwordx4 v[{KA}:{KA+3}], v{VKM}, s[24:27], s48 offen")
    I(f"buffer_load_dwordx4 v[{KB_}:{KB_+3}], v{VKM}, s[24:27], s48 offen offset:{32*ROWB}")
    I(f"buffer_load_dwordx2 v[{KR}:{KR+1}], v{VKR}, s[24:27], s48 offen offset:32")
    I("s_waitcnt vmcnt(0)")
    I(mf_a(SA)); I(mf_a(SA+16, KB_))
    I("s_nop 9")
    I(mf_c(SA))
    I("s_nop 15")
    I("s_nop 4")
I("s_mov_b32 s48, 0")
emit("L_FB_MAX:")
fb_qk()
for i in range(16):
    I(f"v_max3_f32 v{T+5}, v{SA+2*i}, v{SA+2*i+1}, v{T+5}")
I(f"s_add_u32 s48, s48, {BLK}")
I(f"s_cmp_lt_u32 s48, {HEADB}")
I("s_cbranch_scc1 L_FB_MAX")
I(f"v_mov_b32 v{T+6}, v{T+5}")
I("s_nop 1")
I(f"v_permlane32_swap_b32 v{T+5}, v{T+6}")
I("s_nop 1")
I(f"v_max_f32 v{T+5}, v{T+5}, v{T+6}")
I("s_mov_b32 s48, 0")
emit("L_FB_PV:")
I("s_mov_b64 exec, s[44:45]")
for j in range(4):
    for t in range(8):
        I(f"buffer_load_ushort v{SB+8*j+t}, v{VV}, s[28:31], s48 offen offset:{(16*j+t)*ROWB}")
I("s_waitcnt vmcnt(0)")
for i in range(16):
    I(f"v_lshl_or_b32 v{V0+i}, v{SB+2*i+1}, 16, v{SB+2*i}")
I("s_mov_b64 exec, -1")
fb_qk()
for i in range(32):
    I(f"v_sub_f32 v{SA+i}, v{SA+i}, v{T+5}")
for i in range(32):
    I(f"v_exp_f32 v{SA+i}, v{SA+i}")
I("s_nop 1")
for j in range(4):
    I(mf_s(SA, j))
I(f"s_add_u32 s48, s48, {BLK}")
I(f"s_cmp_lt_u32 s48, {HEADB}")
I("s_cbranch_scc1 L_FB_PV")
I("s_nop 15")
I("s_branch L_FIN")

emit('.section .rodata,"a"')
emit(".p2align 6")
emit(f".amdhsa_kernel {NAME}_kernel")
emit(f"  .amdhsa_next_free_vgpr {NV}")
emit(f"  .amdhsa_next_free_sgpr {102 if PROF else 64}")
emit(f"  .amdhsa_accum_offset {NV}")
emit("  .amdhsa_group_segment_fixed_size 0")
emit("  .amdhsa_kernarg_size 48")
emit("  .amdhsa_user_sgpr_count 2")
emit("  .amdhsa_user_sgpr_kernarg_segment_ptr 1")
emit("  .amdhsa_system_sgpr_workgroup_id_x 1")
emit(".end_amdhsa_kernel")
path = sys.argv[1] if len(sys.argv) > 1 else f"cdna_kernels/{NAME}.s"
open(path, "w").write("\n".join(out) + "\n")
```

```python
import sys, struct, math, os

NAME = "standalone__fused_io_aware_attn__prompt"
H, S, D = 32, 2048, 20
ROWB = D * 2
HEADB = S * ROWB
TOTB = H * HEADB
VBASE = 81920
VRING = 61440
VEND = VBASE + VRING
ONES = VEND + (0 if 'conf' in os.environ.get('OPT', '') else 224)
BLK = 64 * ROWB
NSTEP = 4
TRIPB = NSTEP * BLK
LDS = ONES + TRIPB

OPT = set(os.environ.get("OPT", "").split(","))
PROF = os.environ.get("PROF", "") == "4"
FINE = "fine" in OPT
STFLAG = os.environ.get("STFLAG", "")

def f32(x): return struct.unpack("<I", struct.pack("<f", x))[0]
CSCALE = f32(D ** -0.5 * math.log2(math.e))

SA, SB, O = 0, 32, 64
QM, QR = 80, 84
KA, KB_, KR = 86, 90, 94
V0 = 96
IDX, VKM, VKR, VV, VINC, VDUM, VDMA, VQ = 112, 113, 114, 115, 116, 117, 118, 119
T = 120
NV = 128
sWAVE, sHEADOFF, sTRIP, sMASK, sSOFF, sISF, sLIM, sQOFF, sVINC = 33, 34, 35, 36, 37, 38, 39, 46, 47

out = []
def emit(s=""): out.append(s)
def I(s): out.append("    " + s)
def stamp(i):
    if PROF: I(f"s_memtime s[{64+2*i}:{65+2*i}]")
def rstamp(i):
    if PROF: I(f"s_memrealtime s[{64+2*i}:{65+2*i}]")
def fs(k):
    if FINE: I(f"s_memtime s[{64+2*k}:{65+2*k}]")

def mf_a(N, K=KA, c="0"): return f"v_mfma_f32_32x32x16_bf16 v[{N}:{N+15}], v[{K}:{K+3}], v[{QM}:{QM+3}], {c}"
def mf_c(N, K=KR, c=None): return f"v_mfma_f32_32x32x4_2b_bf16 v[{N}:{N+31}], v[{K}:{K+1}], v[{QR}:{QR+1}], {c or f'v[{N}:{N+31}]'} blgp:1"
def mf_s(Sx, j): return f"v_smfmac_f32_32x32x32_bf16 v[{O}:{O+15}], v[{V0+4*j}:{V0+4*j+3}], v[{Sx+8*j}:{Sx+8*j+7}], v{IDX}"

def burst(par, extra=None, last=False, bar=False):
    Sx = SA if par == 0 else SB
    N = SB if par == 0 else SA
    e = lambda i: f"v_exp_f32 v{Sx+i}, v{Sx+i}"
    a, b, c = mf_a(N), mf_a(N+16, KB_), mf_c(N)
    s = [mf_s(Sx, j) for j in range(4)]
    seq = [e(0), "s_setprio 1", e(1), e(2), e(3), e(4), a, e(5), e(6), e(7), b, e(8), e(9), e(10), s[0], e(11), e(12), e(13), c]
    seq += [e(i) for i in range(14, 22)] + [s[1], e(22), e(23), e(24), e(25), s[2]]
    seq += [e(i) for i in range(26, 32)]
    if last:
        seq = [x for x in seq if x not in (a, b, c)]
    if extra:
        k = seq.index(e(28))
        seq = seq[:k] + extra + seq[k:]
    if bar:
        seq += ["s_waitcnt vmcnt(2)", "s_barrier"]
    else:
        seq += ["s_nop 1"]
    seq += [s[3], "s_setprio 2" if last else "s_setprio 0"]
    for x in seq: I(x)

def kreads(blk, ka=KA, kb=KB_, kr=KR):
    o = blk * BLK
    I(f"ds_read_b64 v[{kr}:{kr+1}], v{VKR} offset:{o}")
    I(f"ds_read_b64 v[{ka}:{ka+1}], v{VKM} offset:{o}")
    I(f"ds_read_b64 v[{ka+2}:{ka+3}], v{VKM} offset:{o+8}")
    I(f"ds_read_b64 v[{kb}:{kb+1}], v{VKM} offset:{o+32*ROWB}")
    I(f"ds_read_b64 v[{kb+2}:{kb+3}], v{VKM} offset:{o+32*ROWB+8}")
def voff(blk, j): return blk * BLK + ROWB * (16 * (j // 2) + 4 * (j % 2))
def vreads(blk):
    for j in range(8):
        I(f"ds_read_b64_tr_b16 v[{V0+2*j}:{V0+2*j+1}], v{VV} offset:{voff(blk, j)}")
def dma():
    I(f"buffer_load_dwordx4 v{VDMA}, s[16:19], s{sSOFF} offen lds")
    I("s_addk_i32 m0, 4096")
    I(f"s_addk_i32 s{sSOFF}, 4096")
def cdma(tag):
    I(f"s_cmp_ge_u32 s{sSOFF}, s45")
    I(f"s_cbranch_scc1 L_ND{tag}")
    dma()
    emit(f"L_ND{tag}:")
def qloads():
    I(f"buffer_load_dwordx2 v[{QR}:{QR+1}], v{VQ}, s[12:15], 0 offen offset:32")
    I(f"buffer_load_dwordx4 v[{QM}:{QM+3}], v{VQ}, s[12:15], 0 offen")
def qconv(regs):
    for i, r in enumerate(regs):
        I(f"v_lshlrev_b32 v{T+2*i}, 16, v{r}")
        I(f"v_and_b32 v{T+2*i+1}, s41, v{r}")
    for i in range(2*len(regs)):
        I(f"v_mul_f32 v{T+i}, s40, v{T+i}")
    for i, r in enumerate(regs):
        I(f"v_cvt_pk_bf16_f32 v{r}, v{T+2*i}, v{T+2*i+1}")

hdr = open("cdna_kernels/%s.s.ref" % NAME).read().split("; Override")[0]
emit(hdr.rstrip())
emit("; Override launch geometry by editing the next line.")
emit(f"; @launch grid=(256,1,1) block=(512,1,1) lds={LDS}")
emit(""";
""")
emit('.amdgcn_target "amdgcn-amd-amdhsa--gfx950"')
emit(".text")
emit(f".globl {NAME}_kernel")
emit(".p2align 12")
emit(".p2align 8")
emit(f".type {NAME}_kernel,@function")
emit(f"{NAME}_kernel:")
DIAG = os.environ.get("DIAG", "")
if DIAG:
    I("s_memrealtime s[52:53]")
    I("s_memtime s[54:55]")
    I("s_load_dwordx2 s[60:61], s[0:1], 32")
rstamp(8)
stamp(0)
I("s_load_dwordx4 s[4:7], s[0:1], 8")
I("s_load_dwordx2 s[12:13], s[0:1], 0")
I("s_load_dwordx2 s[20:21], s[0:1], 24")
if PROF: I("s_load_dwordx2 s[60:61], s[0:1], 40")
I(f"v_readfirstlane_b32 s{sWAVE}, v0")
I("s_cmp_ge_u32 s2, 256")
I("s_cbranch_scc1 L_END")
I(f"v_and_b32 v{T+1}, 63, v0")
I(f"v_and_b32 v{T+2}, 31, v0")
I(f"v_bfe_u32 v{T+3}, v0, 5, 1")
I(f"s_lshr_b32 s{sWAVE}, s{sWAVE}, 6")
I("s_and_b32 s40, s2, 7")
I("s_lshr_b32 s41, s2, 6")
I("s_lshl2_add_u32 s40, s40, s41")
I(f"s_mov_b32 s45, {HEADB}")
I(f"s_mul_i32 s{sHEADOFF}, s40, s45")
I("s_and_b32 s41, s2, 0x38")
I(f"s_add_u32 s41, s41, s{sWAVE}")
I(f"s_mulk_i32 s41, {32*ROWB}")
I(f"s_add_u32 s{sQOFF}, s41, s{sHEADOFF}")
I(f"v_mul_u32_u24 v{VKM}, {ROWB}, v{T+2}")
I(f"v_lshl_add_u32 v{VKM}, v{T+3}, 4, v{VKM}")
I(f"v_add_u32 v{VQ}, s{sQOFF}, v{VKM}")
I(f"v_lshl_add_u32 v{VDMA}, v{T+1}, 4, s{sHEADOFF}")
I(f"s_and_b32 s42, s{sWAVE}, 3")
I(f"s_lshl_b32 s{sSOFF}, s42, 10")
I(f"s_lshr_b32 s{sISF}, s{sWAVE}, 2")
I(f"s_mul_i32 s43, s{sISF}, s45")
I(f"s_add_u32 m0, s43, s{sSOFF}")
I(f"s_mov_b32 s14, {TOTB}")
I("s_mov_b32 s15, 0x00020000")
I("s_mov_b64 s[18:19], s[14:15]")
I("s_mov_b64 s[26:27], s[14:15]")
I(f"s_cmp_eq_u32 s{sWAVE}, 3")
I(f"s_cselect_b32 s44, 0x1000, s{sSOFF}")
I("s_cselect_b32 s43, 0, s45")
I("s_add_u32 s43, s43, s44")
I(f"s_mov_b32 s{sLIM}, {VEND}")
I(f"s_cmp_lg_u32 s{sISF}, 0")
I("s_cbranch_scc1 L_SETUP")
I("s_setprio 3")
I(f"s_cmp_eq_u32 s{sWAVE}, 3")
I("s_waitcnt lgkmcnt(0)")
fs(10)
I("s_mov_b64 s[16:17], s[4:5]")
I(f"buffer_load_dwordx4 v{VDMA}, s[16:19], s{sSOFF} offen lds")
I("s_cselect_b64 s[24:25], s[4:5], s[6:7]")
I("s_mov_b32 m0, s43")
I(f"s_addk_i32 s{sSOFF}, 4096")
I(f"buffer_load_dwordx4 v{VDMA}, s[24:27], s44 offen lds")
qloads()
fs(11)
I("s_barrier")
I(f"s_mov_b32 m0, s{sSOFF}")
I(f"s_mov_b32 s{sLIM}, -1")
if "ldelay" in OPT: I("s_setprio 0")
dma()
dma()
if "ldelay" in OPT: I("s_setprio 3")
emit("L_SETUP:")
maskB = sum(1 << t for t in (0, 1, 2, 4))
I(f"s_movk_i32 s{sMASK}, {maskB}")
I("s_mov_b64 s[22:23], s[14:15]")
I(f"v_mul_u32_u24 v{VKR}, {ROWB}, v{T+1}")
I(f"v_add_u32 v{VKR}, 32, v{VKR}")
I(f"v_lshrrev_b32 v{T+4}, 1, v{T+2}")
I(f"v_lshlrev_b32 v{T+4}, 2, v{T+4}")
I(f"v_and_or_b32 v{T+4}, v{T+2}, 1, v{T+4}")
I(f"v_mul_u32_u24 v{T+4}, {4*ROWB}, v{T+4}")
I(f"v_add_u32 v{T+4}, {ONES}, v{T+4}")
I(f"v_mov_b32 v{SB}, 0x3f80")
I(f"v_mov_b32 v{SB+1}, 0")
I(f"v_mov_b64 v[{SB+2}:{SB+3}], 0")
I(f"ds_write_b128 v{T+4}, v[{SB}:{SB+3}]")
I(f"v_mov_b32 v{IDX}, 0xdddddddd")
I(f"v_bfe_u32 v{T+4}, v{T+1}, 2, 2")
I(f"v_lshl_add_u32 v{T+4}, v{T+3}, 3, v{T+4}")
I(f"v_mul_u32_u24 v{T+4}, {ROWB}, v{T+4}")
I(f"v_and_b32 v{T+5}, 1, v{T+1}")
I(f"v_lshl_add_u32 v{T+4}, v{T+5}, 4, v{T+4}")
I(f"v_and_b32 v{T+6}, 2, v{T+1}")
I(f"v_lshl_add_u32 v{T+4}, v{T+6}, 2, v{T+4}")
I(f"v_and_b32 v{T+5}, 16, v{T+1}")
I(f"v_lshl_add_u32 v{T+4}, v{T+5}, 1, v{T+4}")
I(f"v_add_u32 v{T+4}, s45, v{T+4}")
I(f"v_and_b32 v{T+5}, 19, v{T+1}")
I(f"v_cmp_lt_u32 vcc, 16, v{T+5}")
I(f"v_lshlrev_b32 v{T+6}, 2, v{T+6}")
I(f"v_sub_u32 v{T+6}, {ONES+8}, v{T+6}")
I(f"v_cndmask_b32 v{VV}, v{T+4}, v{T+6}, vcc")
I(f"v_cndmask_b32 v{VINC}, 1, 0, vcc")
for i in range(8):
    I(f"v_mov_b64 v[{O+2*i}:{O+2*i+1}], 0")
I(f"s_mov_b32 s{sTRIP}, 0")
I(f"s_mov_b32 s40, 0x{CSCALE:08x}")
I("s_mov_b32 s41, 0xffff0000")
I(f"s_movk_i32 s48, {TRIPB}")
I(f"s_cmp_eq_u32 s{sISF}, 0")
I("s_cbranch_scc1 L_R1")
I("s_setprio 2")
I("s_waitcnt lgkmcnt(0)")
fs(10)
I("s_mov_b64 s[16:17], s[6:7]")
I("s_barrier")
dma()
qloads()
fs(11)
dma()
dma()
emit("L_R1:")
dma()
I(f"s_cmp_lg_u32 s{sISF}, 0")
I("s_waitcnt lgkmcnt(0)")
fs(12)
I("s_cbranch_scc1 L_B0")
I("s_waitcnt vmcnt(5)")
emit("L_B0:")
if PROF:
    stamp(4); I("s_waitcnt lgkmcnt(0)")
I("s_barrier")
if DIAG == "pro":
    I("s_memrealtime s[56:57]"); I("s_waitcnt lgkmcnt(0)")
kreads(0, SB, SB+4, SB+8)
fs(13)
I("s_waitcnt vmcnt(4)")
fs(14)
qconv([QR, QR+1])
I("s_waitcnt vmcnt(3) lgkmcnt(%d)" % (0 if FINE else 4))
I("s_nop 0")
I(mf_c(SA, SB+8, "0"))
qconv([QM, QM+1, QM+2, QM+3])
I(f"s_cmp_lg_u32 s{sISF}, 0")
I("s_waitcnt lgkmcnt(0)")
I(mf_a(SA, SB, f"v[{SA}:{SA+15}]"))
I("s_cbranch_scc1 L_FGO")
kreads(1)
I(mf_a(SA+16, SB+4, f"v[{SA+16}:{SA+31}]"))
def first_burst():
    Sx, N = SA, SB
    e = lambda i: f"v_exp_f32 v{Sx+i}, v{Sx+i}"
    vr = lambda j: f"ds_read_b64_tr_b16 v[{V0+2*j}:{V0+2*j+1}], v{VV} offset:{voff(0, j)}"
    a, b, c = mf_a(N), mf_a(N+16, KB_), mf_c(N)
    s = [mf_s(Sx, j) for j in range(4)]
    for j in range(5): I(vr(j))
    fs(15)
    seq = [e(0), "s_setprio 1", e(1), vr(5), e(2), vr(6), e(3), vr(7), e(4),
           f"buffer_load_dwordx4 v{VDMA}, s[16:19], s{sSOFF} offen lds", e(5), "s_addk_i32 m0, 4096", e(6), f"s_addk_i32 s{sSOFF}, 4096", e(7),
           "s_waitcnt lgkmcnt(0)", a, e(8), e(9), e(10), b, e(11), e(12), e(13), s[0], e(14), e(15), e(16), c]
    seq += [e(i) for i in range(17, 25)] + [s[1], e(25), e(26), e(27), s[2], e(28), e(29), e(30), e(31)]
    seq += ["s_waitcnt vmcnt(2)", "s_barrier", s[3], "s_setprio 0"]
    for x in seq: I(x)
first_burst()
fs(16)
I("s_branch L_OFF1")
emit("L_BAR2:")
I(f"s_cmp_lg_u32 s{sISF}, 0")
I("s_cbranch_scc1 L_FBAR2")
KADD = [f"v_add_u32 v{VKM}, s48, v{VKM}", f"v_add_u32 v{VKR}, s48, v{VKR}"]
burst(0, KADD, bar=True)
I("s_branch L_OFF3")
emit("L_FGO:")
I(mf_a(SA+16, SB+4, f"v[{SA+16}:{SA+31}]"))
I("s_setprio 0")
emit("L_LOOP:")
kreads(1); vreads(0)
cdma(0)
I(f"s_cmp_lg_u32 s{sTRIP}, 0")
I("s_cbranch_scc1 L_BURST0")
I("s_waitcnt vmcnt(3) lgkmcnt(0)")
fs(15)
I("s_barrier")
emit("L_BURST0:")
I("s_waitcnt lgkmcnt(0)")
burst(0)
emit("L_OFF1:")
kreads(2); vreads(1)
cdma(1)
I("s_waitcnt lgkmcnt(0)")
burst(1)
kreads(3); vreads(2)
cdma(2)
I(f"s_cmp_ge_u32 m0, s{sLIM}")
I(f"s_cselect_b32 s42, {VRING}, 0")
I("s_sub_u32 m0, m0, s42")
I(f"s_cmp_lg_u32 s{sTRIP}, 4")
I("s_cbranch_scc1 L_NT")
I("s_waitcnt vmcnt(0)")
if "notouch" not in OPT: I(f"buffer_load_dword v{VDUM}, off, s[20:23], s{sQOFF}")
emit("L_NT:")
I(f"s_bitcmp1_b32 s{sMASK}, s{sTRIP}")
I("s_waitcnt lgkmcnt(0)")
I("s_cbranch_scc1 L_BAR2")
I("s_branch L_BURST2")
emit("L_FBAR2:")
I("s_waitcnt vmcnt(2)")
I("s_barrier")
emit("L_BURST2:")
burst(0, KADD)
emit("L_OFF3:")
vreads(3)
I(f"s_cmp_eq_u32 s{sTRIP}, 7")
I("s_cbranch_scc1 L_LAST")
kreads(0)
cdma(3)
I(f"s_cmp_eq_u32 s{sTRIP}, 5")
I(f"s_cselect_b32 s{sVINC}, {TRIPB - VRING}, s48")
I(f"s_add_u32 s{sTRIP}, s{sTRIP}, 1")
I("s_waitcnt lgkmcnt(0)")
burst(1, [f"v_mad_i32_i24 v{VV}, v{VINC}, s{sVINC}, v{VV}"])
I("s_branch L_LOOP")
emit("L_LAST:")
I("s_waitcnt lgkmcnt(0)")
burst(1, None, last=True)
stamp(6)
rstamp(17)
I(f"s_mov_b32 s40, 0x71800000")
I("s_nop 9")
emit("L_FIN:")
I(f"v_rcp_f32 v{T}, v{O+12}")
I(f"v_cmp_le_f32 vcc, 1.0, v{O+12}")
def muls(r):
    for i in r:
        if "nopk" not in OPT:
            I(f"v_pk_mul_f32 v[{O+2*i}:{O+2*i+1}], v[{O+2*i}:{O+2*i+1}], v[{T}:{T+1}] op_sel_hi:[1,0]")
        else:
            I(f"v_mul_f32 v{O+2*i}, v{T}, v{O+2*i}"); I(f"v_mul_f32 v{O+2*i+1}, v{T}, v{O+2*i+1}")
muls(range(4))
for i in range(4):
    I(f"v_cvt_pk_bf16_f32 v{SA+i}, v{O+2*i}, v{O+2*i+1}")
I(f"buffer_store_dwordx4 v[{SA}:{SA+3}], v{VQ}, s[20:23], 0 offen {STFLAG}")
if "efine" in OPT: I("s_memtime s[84:85]")
muls(range(4, 6))
for i in range(4, 6):
    I(f"v_cvt_pk_bf16_f32 v{SA+i}, v{O+2*i}, v{O+2*i+1}")
I("s_mov_b32 exec_hi, 0")
I(f"buffer_store_dwordx2 v[{SA+4}:{SA+5}], v{VQ}, s[20:23], 0 offen offset:32 {STFLAG}")
I("s_mov_b32 exec_hi, -1")
if "efine" in OPT:
    I("s_memtime s[86:87]")
    I("s_waitcnt vmcnt(1)")
    I("s_memtime s[88:89]")
    I("s_waitcnt vmcnt(0)")
    I("s_memtime s[90:91]")
I("s_setprio 0")
I(f"s_cmp_eq_u32 s{sTRIP}, 9")
I("s_cbranch_scc1 L_DONE")
I(f"v_cmp_ge_f32 s[42:43], s40, v{O+12}")
I(f"v_dot2_f32_bf16 v{T+2}, v{SA}, 0, 0")
for i in range(1, 6):
    I(f"v_dot2_f32_bf16 v{T+2}, v{SA+i}, 0, v{T+2}")
I("s_and_b64 vcc, vcc, s[42:43]")
I("s_nop 1")
I(f"v_cmp_eq_f32 s[42:43], 0, v{T+2}")
I("s_nop 0")
I("s_and_b64 vcc, vcc, s[42:43]")
I("s_cmp_eq_u64 vcc, -1")
if not FINE: I("s_cbranch_scc0 L_FALLBACK")
emit("L_DONE:")
if DIAG:
    I(f"s_cmp_lg_u32 s{sWAVE}, 7")
    I("s_cbranch_scc1 L_END")
    I("s_waitcnt vmcnt(0)")
    I("s_memrealtime s[58:59]")
    I("s_movk_i32 s62, 256")
    I("s_mov_b32 s63, 0x00020000")
    I("s_mov_b64 exec, 1")
    I("s_waitcnt lgkmcnt(0)")
    I("s_not_b32 s40, s52")
    I("v_mov_b32 v1, s40")
    if DIAG == "skew": I("v_mov_b32 v2, s52")
    if DIAG == "span": I("v_mov_b32 v2, s58")
    if DIAG in ("pro", "dur"):
        I("s_sub_u32 s40, %s, s52" % ("s56" if DIAG == "pro" else "s58"))
        I("v_mov_b32 v2, s40")
        I("buffer_atomic_add v2, off, s[60:63], 0 offset:4")
    else:
        I("buffer_atomic_umax v1, off, s[60:63], 0")
        I("buffer_atomic_umax v2, off, s[60:63], 0 offset:4")
    I("s_waitcnt vmcnt(0)")
    I("v_mov_b32 v3, 1")
    I("buffer_atomic_add v3, off, s[60:63], 0 offset:8 sc0")
    I("s_waitcnt vmcnt(0)")
    I("v_readfirstlane_b32 s40, v3")
    I("s_nop 3")
    I("s_cmp_lg_u32 s40, 255")
    I("s_cbranch_scc1 L_END")
    I("v_mov_b32 v1, 0")
    I("v_mov_b32 v2, 0")
    I("buffer_atomic_add v1, off, s[60:63], 0 sc0")
    I("buffer_atomic_add v2, off, s[60:63], 0 offset:4 sc0")
    I("s_waitcnt vmcnt(0)")
    I("v_readfirstlane_b32 s40, v1")
    I("v_readfirstlane_b32 s41, v2")
    I("s_nop 3")
    if DIAG in ("pro", "dur"):
        I("s_lshr_b32 s41, s41, 8")
    else:
        I("s_not_b32 s40, s40")
        I("s_sub_u32 s41, s41, s40")
    I("s_min_u32 s41, s41, 5000")
    I("v_mov_b32 v1, s41")
    I("buffer_store_dword v1, off, s[60:63], 0 offset:12")
    I("s_mul_i32 s41, s41, %s" % os.environ.get("KMUL", "10"))
    I("s_memrealtime s[42:43]")
    I("s_waitcnt lgkmcnt(0)")
    emit("L_SPIN:")
    I("s_memrealtime s[44:45]")
    I("s_waitcnt lgkmcnt(0)")
    I("s_sub_u32 s44, s44, s42")
    I("s_cmp_lt_u32 s44, s41")
    I("s_cbranch_scc1 L_SPIN")
if PROF:
    I("s_waitcnt vmcnt(0)")
    stamp(7)
    rstamp(9)
    I("s_mov_b32 s62, 0x10000000")
    I("s_mov_b32 s63, 0x00020000")
    I("s_lshl_b32 s40, s2, 3")
    I(f"s_add_u32 s40, s40, s{sWAVE}")
    I("s_lshl_b32 s40, s40, 7")
    I("s_mov_b64 exec, 1")
    I("v_mov_b32 v1, s40")
    I("s_waitcnt lgkmcnt(0)")
    for i in range(18):
        I(f"v_mov_b32 v2, s{64+2*i}")
        I(f"buffer_store_dword v2, v1, s[60:63], 0 offen offset:{4*i}")
emit("L_END:")
I("s_endpgm")

emit("L_FALLBACK:")
I("s_waitcnt vmcnt(0)")
I(f"s_mov_b32 s{sTRIP}, 9")
I("s_mov_b64 s[24:25], s[4:5]")
I("s_mov_b64 s[26:27], s[14:15]")
I("s_mov_b64 s[28:29], s[6:7]")
I("s_mov_b64 s[30:31], s[14:15]")
I(f"v_mbcnt_lo_u32_b32 v{T+1}, -1, 0")
I(f"v_mbcnt_hi_u32_b32 v{T+1}, -1, v{T+1}")
I(f"v_and_b32 v{T+2}, 31, v{T+1}")
I(f"v_lshrrev_b32 v{T+3}, 5, v{T+1}")
I(f"v_mul_u32_u24 v{VKM}, {ROWB}, v{T+2}")
I(f"v_lshl_add_u32 v{VKM}, v{T+3}, 4, v{VKM}")
I(f"v_add_u32 v{VKM}, s{sHEADOFF}, v{VKM}")
I(f"v_mul_u32_u24 v{VKR}, {ROWB}, v{T+1}")
I(f"v_add_u32 v{VKR}, s{sHEADOFF}, v{VKR}")
I(f"v_mul_u32_u24 v{VV}, {8*ROWB}, v{T+3}")
I(f"v_bfe_u32 v{T+4}, v{T+2}, 2, 1")
I(f"v_lshl_add_u32 v{VV}, v{T+4}, 4, v{VV}")
I(f"v_bfe_u32 v{T+4}, v{T+2}, 3, 1")
I(f"v_lshl_add_u32 v{VV}, v{T+4}, 3, v{VV}")
I(f"v_bfe_u32 v{T+4}, v{T+2}, 4, 1")
I(f"v_lshl_add_u32 v{VV}, v{T+4}, 5, v{VV}")
I(f"v_and_b32 v{T+4}, 3, v{T+2}")
I(f"v_lshl_add_u32 v{VV}, v{T+4}, 1, v{VV}")
I(f"v_add_u32 v{VV}, s{sHEADOFF}, v{VV}")
I(f"v_cmp_gt_u32 s[44:45], 20, v{T+2}")
for i in range(16):
    I(f"v_mov_b32 v{V0+i}, 0x3f803f80")
    I(f"v_mov_b32 v{O+i}, 0")
I(f"v_mov_b32 v{T+5}, 0xff800000")
def fb_qk():
    I(f"buffer_load_dwordx4 v[{KA}:{KA+3}], v{VKM}, s[24:27], s48 offen")
    I(f"buffer_load_dwordx4 v[{KB_}:{KB_+3}], v{VKM}, s[24:27], s48 offen offset:{32*ROWB}")
    I(f"buffer_load_dwordx2 v[{KR}:{KR+1}], v{VKR}, s[24:27], s48 offen offset:32")
    I("s_waitcnt vmcnt(0)")
    I(mf_a(SA)); I(mf_a(SA+16, KB_))
    I("s_nop 9")
    I(mf_c(SA))
    I("s_nop 15")
    I("s_nop 4")
I("s_mov_b32 s48, 0")
emit("L_FB_MAX:")
fb_qk()
for i in range(16):
    I(f"v_max3_f32 v{T+5}, v{SA+2*i}, v{SA+2*i+1}, v{T+5}")
I(f"s_add_u32 s48, s48, {BLK}")
I(f"s_cmp_lt_u32 s48, {HEADB}")
I("s_cbranch_scc1 L_FB_MAX")
I(f"v_mov_b32 v{T+6}, v{T+5}")
I("s_nop 1")
I(f"v_permlane32_swap_b32 v{T+5}, v{T+6}")
I("s_nop 1")
I(f"v_max_f32 v{T+5}, v{T+5}, v{T+6}")
I("s_mov_b32 s48, 0")
emit("L_FB_PV:")
I("s_mov_b64 exec, s[44:45]")
for j in range(4):
    for t in range(8):
        I(f"buffer_load_ushort v{SB+8*j+t}, v{VV}, s[28:31], s48 offen offset:{(16*j+t)*ROWB}")
I("s_waitcnt vmcnt(0)")
for i in range(16):
    I(f"v_lshl_or_b32 v{V0+i}, v{SB+2*i+1}, 16, v{SB+2*i}")
I("s_mov_b64 exec, -1")
fb_qk()
for i in range(32):
    I(f"v_sub_f32 v{SA+i}, v{SA+i}, v{T+5}")
for i in range(32):
    I(f"v_exp_f32 v{SA+i}, v{SA+i}")
I("s_nop 1")
for j in range(4):
    I(mf_s(SA, j))
I(f"s_add_u32 s48, s48, {BLK}")
I(f"s_cmp_lt_u32 s48, {HEADB}")
I("s_cbranch_scc1 L_FB_PV")
I("s_nop 15")
I("s_branch L_FIN")

emit('.section .rodata,"a"')
emit(".p2align 6")
emit(f".amdhsa_kernel {NAME}_kernel")
emit(f"  .amdhsa_next_free_vgpr {NV}")
emit(f"  .amdhsa_next_free_sgpr {102 if PROF else 64}")
emit(f"  .amdhsa_accum_offset {NV}")
emit("  .amdhsa_group_segment_fixed_size 0")
emit("  .amdhsa_kernarg_size 48")
emit("  .amdhsa_user_sgpr_count 2")
emit("  .amdhsa_user_sgpr_kernarg_segment_ptr 1")
emit("  .amdhsa_system_sgpr_workgroup_id_x 1")
emit(".end_amdhsa_kernel")
path = sys.argv[1] if len(sys.argv) > 1 else f"cdna_kernels/{NAME}.s"
open(path, "w").write("\n".join(out) + "\n")
```

```python
import sys, struct, math, os

NAME = "standalone__fused_io_aware_attn__prompt"
H, S, D = 32, 2048, 20
ROWB = D * 2
HEADB = S * ROWB
TOTB = H * HEADB
VBASE = 81920
VRING = 61440
VEND = VBASE + VRING
ONES = VEND + (0 if 'conf' in os.environ.get('OPT', '') else 224)
BLK = 64 * ROWB
NSTEP = 4
TRIPB = NSTEP * BLK
LDS = ONES + TRIPB

OPT = set(os.environ.get("OPT", "").split(","))
PROF = os.environ.get("PROF", "") == "4"
FINE = "fine" in OPT
STFLAG = os.environ.get("STFLAG", "")

def f32(x): return struct.unpack("<I", struct.pack("<f", x))[0]
CSCALE = f32(D ** -0.5 * math.log2(math.e))

SA, SB, O = 0, 32, 64
QM, QR = 80, 84
KA, KB_, KR = 86, 90, 94
V0 = 96
IDX, VKM, VKR, VV, VINC, VDUM, VDMA, VQ = 112, 113, 114, 115, 116, 117, 118, 119
T = 120
NV = 128
sWAVE, sHEADOFF, sTRIP, sMASK, sSOFF, sISF, sLIM, sQOFF, sVINC = 33, 34, 35, 36, 37, 38, 39, 46, 47

out = []
def emit(s=""): out.append(s)
def I(s): out.append("    " + s)
def stamp(i):
    if PROF: I(f"s_memtime s[{64+2*i}:{65+2*i}]")
def rstamp(i):
    if PROF: I(f"s_memrealtime s[{64+2*i}:{65+2*i}]")
def fs(k):
    if FINE: I(f"s_memtime s[{64+2*k}:{65+2*k}]")

def mf_a(N, K=KA, c="0"): return f"v_mfma_f32_32x32x16_bf16 v[{N}:{N+15}], v[{K}:{K+3}], v[{QM}:{QM+3}], {c}"
def mf_c(N, K=KR, c=None): return f"v_mfma_f32_32x32x4_2b_bf16 v[{N}:{N+31}], v[{K}:{K+1}], v[{QR}:{QR+1}], {c or f'v[{N}:{N+31}]'} blgp:1"
def mf_s(Sx, j): return f"v_smfmac_f32_32x32x32_bf16 v[{O}:{O+15}], v[{V0+4*j}:{V0+4*j+3}], v[{Sx+8*j}:{Sx+8*j+7}], v{IDX}"

def burst(par, extra=None, last=False, bar=False):
    Sx = SA if par == 0 else SB
    N = SB if par == 0 else SA
    e = lambda i: f"v_exp_f32 v{Sx+i}, v{Sx+i}"
    a, b, c = mf_a(N), mf_a(N+16, KB_), mf_c(N)
    s = [mf_s(Sx, j) for j in range(4)]
    seq = [e(0), "s_setprio 1", e(1), e(2), e(3), e(4), a, e(5), e(6), e(7), b, e(8), e(9), e(10), s[0], e(11), e(12), e(13), c]
    seq += [e(i) for i in range(14, 22)] + [s[1], e(22), e(23), e(24), e(25), s[2]]
    seq += [e(i) for i in range(26, 32)]
    if last:
        seq = [x for x in seq if x not in (a, b, c)]
    if extra:
        k = seq.index(e(28))
        seq = seq[:k] + extra + seq[k:]
    if bar:
        seq += ["s_waitcnt vmcnt(2)", "s_barrier"]
    else:
        seq += ["s_nop 1"]
    seq += [s[3], "s_setprio 2" if last else "s_setprio 0"]
    for x in seq: I(x)

def kreads(blk, ka=KA, kb=KB_, kr=KR):
    o = blk * BLK
    I(f"ds_read_b64 v[{kr}:{kr+1}], v{VKR} offset:{o}")
    I(f"ds_read_b64 v[{ka}:{ka+1}], v{VKM} offset:{o}")
    I(f"ds_read_b64 v[{ka+2}:{ka+3}], v{VKM} offset:{o+8}")
    I(f"ds_read_b64 v[{kb}:{kb+1}], v{VKM} offset:{o+32*ROWB}")
    I(f"ds_read_b64 v[{kb+2}:{kb+3}], v{VKM} offset:{o+32*ROWB+8}")
def voff(blk, j): return blk * BLK + ROWB * (16 * (j // 2) + 4 * (j % 2))
def vreads(blk):
    for j in range(8):
        I(f"ds_read_b64_tr_b16 v[{V0+2*j}:{V0+2*j+1}], v{VV} offset:{voff(blk, j)}")
def dma():
    I(f"buffer_load_dwordx4 v{VDMA}, s[16:19], s{sSOFF} offen lds")
    I("s_addk_i32 m0, 4096")
    I(f"s_addk_i32 s{sSOFF}, 4096")
def cdma(tag):
    I(f"s_cmp_ge_u32 s{sSOFF}, s45")
    I(f"s_cbranch_scc1 L_ND{tag}")
    dma()
    emit(f"L_ND{tag}:")
def qloads():
    I(f"buffer_load_dwordx2 v[{QR}:{QR+1}], v{VQ}, s[12:15], 0 offen offset:32")
    I(f"buffer_load_dwordx4 v[{QM}:{QM+3}], v{VQ}, s[12:15], 0 offen")
def qconv(regs):
    for i, r in enumerate(regs):
        I(f"v_lshlrev_b32 v{T+2*i}, 16, v{r}")
        I(f"v_and_b32 v{T+2*i+1}, s41, v{r}")
    for i in range(2*len(regs)):
        I(f"v_mul_f32 v{T+i}, s40, v{T+i}")
    for i, r in enumerate(regs):
        I(f"v_cvt_pk_bf16_f32 v{r}, v{T+2*i}, v{T+2*i+1}")

hdr = open("cdna_kernels/%s.s.ref" % NAME).read().split("; Override")[0]
emit(hdr.rstrip())
emit("; Override launch geometry by editing the next line.")
emit(f"; @launch grid=(256,1,1) block=(512,1,1) lds={LDS}")
emit(""";
""")
emit('.amdgcn_target "amdgcn-amd-amdhsa--gfx950"')
emit(".text")
emit(f".globl {NAME}_kernel")
emit(".p2align 12")
emit(".p2align 8")
emit(f".type {NAME}_kernel,@function")
emit(f"{NAME}_kernel:")
DIAG = os.environ.get("DIAG", "")
if DIAG:
    I("s_memrealtime s[52:53]")
    I("s_memtime s[54:55]")
    I("s_load_dwordx2 s[60:61], s[0:1], 32")
XW = int(os.environ.get("XW", "0")); XWMID = int(os.environ.get("XWMID", "0"))
if XW or XWMID: I("s_load_dwordx2 s[56:57], s[0:1], 40")
rstamp(8)
stamp(0)
I("s_load_dwordx4 s[4:7], s[0:1], 8")
I("s_load_dwordx2 s[12:13], s[0:1], 0")
I("s_load_dwordx2 s[20:21], s[0:1], 24")
if PROF: I("s_load_dwordx2 s[60:61], s[0:1], 40")
I(f"v_readfirstlane_b32 s{sWAVE}, v0")
I("s_cmp_ge_u32 s2, 256")
I("s_cbranch_scc1 L_END")
I(f"v_and_b32 v{T+1}, 63, v0")
I(f"v_and_b32 v{T+2}, 31, v0")
I(f"v_bfe_u32 v{T+3}, v0, 5, 1")
I(f"s_lshr_b32 s{sWAVE}, s{sWAVE}, 6")
I("s_and_b32 s40, s2, 7")
I("s_lshr_b32 s41, s2, 6")
I("s_lshl2_add_u32 s40, s40, s41")
I(f"s_mov_b32 s45, {HEADB}")
I(f"s_mul_i32 s{sHEADOFF}, s40, s45")
I("s_and_b32 s41, s2, 0x38")
I(f"s_add_u32 s41, s41, s{sWAVE}")
I(f"s_mulk_i32 s41, {32*ROWB}")
I(f"s_add_u32 s{sQOFF}, s41, s{sHEADOFF}")
I(f"v_mul_u32_u24 v{VKM}, {ROWB}, v{T+2}")
I(f"v_lshl_add_u32 v{VKM}, v{T+3}, 4, v{VKM}")
I(f"v_add_u32 v{VQ}, s{sQOFF}, v{VKM}")
I(f"v_lshl_add_u32 v{VDMA}, v{T+1}, 4, s{sHEADOFF}")
I(f"s_and_b32 s42, s{sWAVE}, 3")
I(f"s_lshl_b32 s{sSOFF}, s42, 10")
I(f"s_lshr_b32 s{sISF}, s{sWAVE}, 2")
I(f"s_mul_i32 s43, s{sISF}, s45")
I(f"s_add_u32 m0, s43, s{sSOFF}")
I(f"s_mov_b32 s14, {TOTB}")
I("s_mov_b32 s15, 0x00020000")
I("s_mov_b64 s[18:19], s[14:15]")
I("s_mov_b64 s[26:27], s[14:15]")
I(f"s_cmp_eq_u32 s{sWAVE}, 3")
I(f"s_cselect_b32 s44, 0x1000, s{sSOFF}")
I("s_cselect_b32 s43, 0, s45")
I("s_add_u32 s43, s43, s44")
I(f"s_mov_b32 s{sLIM}, {VEND}")
I(f"s_cmp_lg_u32 s{sISF}, 0")
I("s_cbranch_scc1 L_SETUP")
I("s_setprio 3")
I(f"s_cmp_eq_u32 s{sWAVE}, 3")
I("s_waitcnt lgkmcnt(0)")
fs(10)
I("s_mov_b64 s[16:17], s[4:5]")
I(f"buffer_load_dwordx4 v{VDMA}, s[16:19], s{sSOFF} offen lds")
I("s_cselect_b64 s[24:25], s[4:5], s[6:7]")
I("s_mov_b32 m0, s43")
I(f"s_addk_i32 s{sSOFF}, 4096")
I(f"buffer_load_dwordx4 v{VDMA}, s[24:27], s44 offen lds")
qloads()
fs(11)
I("s_barrier")
I(f"s_mov_b32 m0, s{sSOFF}")
I(f"s_mov_b32 s{sLIM}, -1")
if "ldelay" in OPT: I("s_setprio 0")
dma()
dma()
if "ldelay" in OPT: I("s_setprio 3")
emit("L_SETUP:")
maskB = sum(1 << t for t in (0, 1, 2, 4))
I(f"s_movk_i32 s{sMASK}, {maskB}")
I("s_mov_b64 s[22:23], s[14:15]")
I(f"v_mul_u32_u24 v{VKR}, {ROWB}, v{T+1}")
I(f"v_add_u32 v{VKR}, 32, v{VKR}")
I(f"v_lshrrev_b32 v{T+4}, 1, v{T+2}")
I(f"v_lshlrev_b32 v{T+4}, 2, v{T+4}")
I(f"v_and_or_b32 v{T+4}, v{T+2}, 1, v{T+4}")
I(f"v_mul_u32_u24 v{T+4}, {4*ROWB}, v{T+4}")
I(f"v_add_u32 v{T+4}, {ONES}, v{T+4}")
I(f"v_mov_b32 v{SB}, 0x3f80")
I(f"v_mov_b32 v{SB+1}, 0")
I(f"v_mov_b64 v[{SB+2}:{SB+3}], 0")
I(f"ds_write_b128 v{T+4}, v[{SB}:{SB+3}]")
I(f"v_mov_b32 v{IDX}, 0xdddddddd")
I(f"v_bfe_u32 v{T+4}, v{T+1}, 2, 2")
I(f"v_lshl_add_u32 v{T+4}, v{T+3}, 3, v{T+4}")
I(f"v_mul_u32_u24 v{T+4}, {ROWB}, v{T+4}")
I(f"v_and_b32 v{T+5}, 1, v{T+1}")
I(f"v_lshl_add_u32 v{T+4}, v{T+5}, 4, v{T+4}")
I(f"v_and_b32 v{T+6}, 2, v{T+1}")
I(f"v_lshl_add_u32 v{T+4}, v{T+6}, 2, v{T+4}")
I(f"v_and_b32 v{T+5}, 16, v{T+1}")
I(f"v_lshl_add_u32 v{T+4}, v{T+5}, 1, v{T+4}")
I(f"v_add_u32 v{T+4}, s45, v{T+4}")
I(f"v_and_b32 v{T+5}, 19, v{T+1}")
I(f"v_cmp_lt_u32 vcc, 16, v{T+5}")
I(f"v_lshlrev_b32 v{T+6}, 2, v{T+6}")
I(f"v_sub_u32 v{T+6}, {ONES+8}, v{T+6}")
I(f"v_cndmask_b32 v{VV}, v{T+4}, v{T+6}, vcc")
I(f"v_cndmask_b32 v{VINC}, 1, 0, vcc")
for i in range(8):
    I(f"v_mov_b64 v[{O+2*i}:{O+2*i+1}], 0")
I(f"s_mov_b32 s{sTRIP}, 0")
I(f"s_mov_b32 s40, 0x{CSCALE:08x}")
I("s_mov_b32 s41, 0xffff0000")
I(f"s_movk_i32 s48, {TRIPB}")
I(f"s_cmp_eq_u32 s{sISF}, 0")
I("s_cbranch_scc1 L_R1")
I("s_setprio 2")
I("s_waitcnt lgkmcnt(0)")
fs(10)
I("s_mov_b64 s[16:17], s[6:7]")
I("s_barrier")
dma()
qloads()
fs(11)
dma()
dma()
emit("L_R1:")
dma()
I(f"s_cmp_lg_u32 s{sISF}, 0")
I("s_waitcnt lgkmcnt(0)")
fs(12)
I("s_cbranch_scc1 L_B0")
I("s_waitcnt vmcnt(5)")
emit("L_B0:")
if PROF:
    stamp(4); I("s_waitcnt lgkmcnt(0)")
I("s_barrier")
if DIAG == "pro":
    I("s_memrealtime s[56:57]"); I("s_waitcnt lgkmcnt(0)")
kreads(0, SB, SB+4, SB+8)
fs(13)
I("s_waitcnt vmcnt(4)")
fs(14)
qconv([QR, QR+1])
I("s_waitcnt vmcnt(3) lgkmcnt(%d)" % (0 if FINE else 4))
I("s_nop 0")
I(mf_c(SA, SB+8, "0"))
qconv([QM, QM+1, QM+2, QM+3])
I(f"s_cmp_lg_u32 s{sISF}, 0")
I("s_waitcnt lgkmcnt(0)")
I(mf_a(SA, SB, f"v[{SA}:{SA+15}]"))
I("s_cbranch_scc1 L_FGO")
kreads(1)
I(mf_a(SA+16, SB+4, f"v[{SA+16}:{SA+31}]"))
def first_burst():
    Sx, N = SA, SB
    e = lambda i: f"v_exp_f32 v{Sx+i}, v{Sx+i}"
    vr = lambda j: f"ds_read_b64_tr_b16 v[{V0+2*j}:{V0+2*j+1}], v{VV} offset:{voff(0, j)}"
    a, b, c = mf_a(N), mf_a(N+16, KB_), mf_c(N)
    s = [mf_s(Sx, j) for j in range(4)]
    for j in range(5): I(vr(j))
    fs(15)
    seq = [e(0), "s_setprio 1", e(1), vr(5), e(2), vr(6), e(3), vr(7), e(4),
           f"buffer_load_dwordx4 v{VDMA}, s[16:19], s{sSOFF} offen lds", e(5), "s_addk_i32 m0, 4096", e(6), f"s_addk_i32 s{sSOFF}, 4096", e(7),
           "s_waitcnt lgkmcnt(0)", a, e(8), e(9), e(10), b, e(11), e(12), e(13), s[0], e(14), e(15), e(16), c]
    seq += [e(i) for i in range(17, 25)] + [s[1], e(25), e(26), e(27), s[2], e(28), e(29), e(30), e(31)]
    seq += ["s_waitcnt vmcnt(2)", "s_barrier", s[3], "s_setprio 0"]
    for x in seq: I(x)
first_burst()
fs(16)
I("s_branch L_OFF1")
emit("L_BAR2:")
I(f"s_cmp_lg_u32 s{sISF}, 0")
I("s_cbranch_scc1 L_FBAR2")
KADD = [f"v_add_u32 v{VKM}, s48, v{VKM}", f"v_add_u32 v{VKR}, s48, v{VKR}"]
burst(0, KADD, bar=True)
I("s_branch L_OFF3")
emit("L_FGO:")
I(mf_a(SA+16, SB+4, f"v[{SA+16}:{SA+31}]"))
I("s_setprio 0")
emit("L_LOOP:")
kreads(1); vreads(0)
cdma(0)
I(f"s_cmp_lg_u32 s{sTRIP}, 0")
I("s_cbranch_scc1 L_BURST0")
I("s_waitcnt vmcnt(3) lgkmcnt(0)")
fs(15)
I("s_barrier")
emit("L_BURST0:")
I("s_waitcnt lgkmcnt(0)")
burst(0)
emit("L_OFF1:")
kreads(2); vreads(1)
cdma(1)
I("s_waitcnt lgkmcnt(0)")
burst(1)
kreads(3); vreads(2)
cdma(2)
I(f"s_cmp_ge_u32 m0, s{sLIM}")
I(f"s_cselect_b32 s42, {VRING}, 0")
I("s_sub_u32 m0, m0, s42")
I(f"s_cmp_lg_u32 s{sTRIP}, 4")
I("s_cbranch_scc1 L_NT")
I("s_waitcnt vmcnt(0)")
if XWMID:
    I("s_mov_b32 s58, 0x10000000"); I("s_mov_b32 s59, 0x00020000")
    I("s_lshl_b32 s50, s2, 3"); I(f"s_add_u32 s50, s50, s{sWAVE}"); I(f"s_mul_i32 s50, s50, {XWMID*1024}"); I(f"s_add_u32 s50, s50, 0x400000"); I(f"s_sub_u32 s50, s50, s{sHEADOFF}")
    for i in range(XWMID):
        I(f"buffer_store_dwordx4 v[{QM}:{QM+3}], v{VDMA}, s[56:59], s50 offen"); I("s_addk_i32 s50, 1024")
if "notouch" not in OPT: I(f"buffer_load_dword v{VDUM}, off, s[20:23], s{sQOFF}")
emit("L_NT:")
I(f"s_bitcmp1_b32 s{sMASK}, s{sTRIP}")
I("s_waitcnt lgkmcnt(0)")
I("s_cbranch_scc1 L_BAR2")
I("s_branch L_BURST2")
emit("L_FBAR2:")
I("s_waitcnt vmcnt(2)")
I("s_barrier")
emit("L_BURST2:")
burst(0, KADD)
emit("L_OFF3:")
vreads(3)
I(f"s_cmp_eq_u32 s{sTRIP}, 7")
I("s_cbranch_scc1 L_LAST")
kreads(0)
cdma(3)
I(f"s_cmp_eq_u32 s{sTRIP}, 5")
I(f"s_cselect_b32 s{sVINC}, {TRIPB - VRING}, s48")
I(f"s_add_u32 s{sTRIP}, s{sTRIP}, 1")
I("s_waitcnt lgkmcnt(0)")
burst(1, [f"v_mad_i32_i24 v{VV}, v{VINC}, s{sVINC}, v{VV}"])
I("s_branch L_LOOP")
emit("L_LAST:")
I("s_waitcnt lgkmcnt(0)")
burst(1, None, last=True)
stamp(6)
rstamp(17)
I(f"s_mov_b32 s40, 0x71800000")
I("s_nop 9")
emit("L_FIN:")
I(f"v_rcp_f32 v{T}, v{O+12}")
I(f"v_cmp_le_f32 vcc, 1.0, v{O+12}")
def muls(r):
    for i in r:
        if "nopk" not in OPT:
            I(f"v_pk_mul_f32 v[{O+2*i}:{O+2*i+1}], v[{O+2*i}:{O+2*i+1}], v[{T}:{T+1}] op_sel_hi:[1,0]")
        else:
            I(f"v_mul_f32 v{O+2*i}, v{T}, v{O+2*i}"); I(f"v_mul_f32 v{O+2*i+1}, v{T}, v{O+2*i+1}")
muls(range(4))
for i in range(4):
    I(f"v_cvt_pk_bf16_f32 v{SA+i}, v{O+2*i}, v{O+2*i+1}")
I(f"buffer_store_dwordx4 v[{SA}:{SA+3}], v{VQ}, s[20:23], 0 offen {STFLAG}")
if "efine" in OPT: I("s_memtime s[84:85]")
muls(range(4, 6))
for i in range(4, 6):
    I(f"v_cvt_pk_bf16_f32 v{SA+i}, v{O+2*i}, v{O+2*i+1}")
I("s_mov_b32 exec_hi, 0")
I(f"buffer_store_dwordx2 v[{SA+4}:{SA+5}], v{VQ}, s[20:23], 0 offen offset:32 {STFLAG}")
I("s_mov_b32 exec_hi, -1")
if XW:
    I("s_mov_b32 s58, 0x10000000"); I("s_mov_b32 s59, 0x00020000")
    I("s_lshl_b32 s50, s2, 3"); I(f"s_add_u32 s50, s50, s{sWAVE}"); I(f"s_mul_i32 s50, s50, {XW*1024}"); I(f"s_add_u32 s50, s50, 0x400000"); I(f"s_sub_u32 s50, s50, s{sHEADOFF}")
    for i in range(XW):
        I(f"buffer_store_dwordx4 v[{SA}:{SA+3}], v{VDMA}, s[56:59], s50 offen"); I("s_addk_i32 s50, 1024")
if "efine" in OPT:
    I("s_memtime s[86:87]")
    I("s_waitcnt vmcnt(1)")
    I("s_memtime s[88:89]")
    I("s_waitcnt vmcnt(0)")
    I("s_memtime s[90:91]")
I("s_setprio 0")
I(f"s_cmp_eq_u32 s{sTRIP}, 9")
I("s_cbranch_scc1 L_DONE")
I(f"v_cmp_ge_f32 s[42:43], s40, v{O+12}")
I(f"v_dot2_f32_bf16 v{T+2}, v{SA}, 0, 0")
for i in range(1, 6):
    I(f"v_dot2_f32_bf16 v{T+2}, v{SA+i}, 0, v{T+2}")
I("s_and_b64 vcc, vcc, s[42:43]")
I("s_nop 1")
I(f"v_cmp_eq_f32 s[42:43], 0, v{T+2}")
I("s_nop 0")
I("s_and_b64 vcc, vcc, s[42:43]")
I("s_cmp_eq_u64 vcc, -1")
if not FINE: I("s_cbranch_scc0 L_FALLBACK")
emit("L_DONE:")
if DIAG:
    I(f"s_cmp_lg_u32 s{sWAVE}, 7")
    I("s_cbranch_scc1 L_END")
    I("s_waitcnt vmcnt(0)")
    I("s_memrealtime s[58:59]")
    I("s_movk_i32 s62, 256")
    I("s_mov_b32 s63, 0x00020000")
    I("s_mov_b64 exec, 1")
    I("s_waitcnt lgkmcnt(0)")
    I("s_not_b32 s40, s52")
    I("v_mov_b32 v1, s40")
    if DIAG == "skew": I("v_mov_b32 v2, s52")
    if DIAG == "span": I("v_mov_b32 v2, s58")
    if DIAG in ("pro", "dur"):
        I("s_sub_u32 s40, %s, s52" % ("s56" if DIAG == "pro" else "s58"))
        I("v_mov_b32 v2, s40")
        I("buffer_atomic_add v2, off, s[60:63], 0 offset:4")
    else:
        I("buffer_atomic_umax v1, off, s[60:63], 0")
        I("buffer_atomic_umax v2, off, s[60:63], 0 offset:4")
    I("s_waitcnt vmcnt(0)")
    I("v_mov_b32 v3, 1")
    I("buffer_atomic_add v3, off, s[60:63], 0 offset:8 sc0")
    I("s_waitcnt vmcnt(0)")
    I("v_readfirstlane_b32 s40, v3")
    I("s_nop 3")
    I("s_cmp_lg_u32 s40, 255")
    I("s_cbranch_scc1 L_END")
    I("v_mov_b32 v1, 0")
    I("v_mov_b32 v2, 0")
    I("buffer_atomic_add v1, off, s[60:63], 0 sc0")
    I("buffer_atomic_add v2, off, s[60:63], 0 offset:4 sc0")
    I("s_waitcnt vmcnt(0)")
    I("v_readfirstlane_b32 s40, v1")
    I("v_readfirstlane_b32 s41, v2")
    I("s_nop 3")
    if DIAG in ("pro", "dur"):
        I("s_lshr_b32 s41, s41, 8")
    else:
        I("s_not_b32 s40, s40")
        I("s_sub_u32 s41, s41, s40")
    I("s_min_u32 s41, s41, 5000")
    I("v_mov_b32 v1, s41")
    I("buffer_store_dword v1, off, s[60:63], 0 offset:12")
    I("s_mul_i32 s41, s41, %s" % os.environ.get("KMUL", "10"))
    I("s_memrealtime s[42:43]")
    I("s_waitcnt lgkmcnt(0)")
    emit("L_SPIN:")
    I("s_memrealtime s[44:45]")
    I("s_waitcnt lgkmcnt(0)")
    I("s_sub_u32 s44, s44, s42")
    I("s_cmp_lt_u32 s44, s41")
    I("s_cbranch_scc1 L_SPIN")
if PROF:
    I("s_waitcnt vmcnt(0)")
    stamp(7)
    rstamp(9)
    I("s_mov_b32 s62, 0x10000000")
    I("s_mov_b32 s63, 0x00020000")
    I("s_lshl_b32 s40, s2, 3")
    I(f"s_add_u32 s40, s40, s{sWAVE}")
    I("s_lshl_b32 s40, s40, 7")
    I("s_mov_b64 exec, 1")
    I("v_mov_b32 v1, s40")
    I("s_waitcnt lgkmcnt(0)")
    for i in range(18):
        I(f"v_mov_b32 v2, s{64+2*i}")
        I(f"buffer_store_dword v2, v1, s[60:63], 0 offen offset:{4*i}")
emit("L_END:")
I("s_endpgm")

emit("L_FALLBACK:")
I("s_waitcnt vmcnt(0)")
I(f"s_mov_b32 s{sTRIP}, 9")
I("s_mov_b64 s[24:25], s[4:5]")
I("s_mov_b64 s[26:27], s[14:15]")
I("s_mov_b64 s[28:29], s[6:7]")
I("s_mov_b64 s[30:31], s[14:15]")
I(f"v_mbcnt_lo_u32_b32 v{T+1}, -1, 0")
I(f"v_mbcnt_hi_u32_b32 v{T+1}, -1, v{T+1}")
I(f"v_and_b32 v{T+2}, 31, v{T+1}")
I(f"v_lshrrev_b32 v{T+3}, 5, v{T+1}")
I(f"v_mul_u32_u24 v{VKM}, {ROWB}, v{T+2}")
I(f"v_lshl_add_u32 v{VKM}, v{T+3}, 4, v{VKM}")
I(f"v_add_u32 v{VKM}, s{sHEADOFF}, v{VKM}")
I(f"v_mul_u32_u24 v{VKR}, {ROWB}, v{T+1}")
I(f"v_add_u32 v{VKR}, s{sHEADOFF}, v{VKR}")
I(f"v_mul_u32_u24 v{VV}, {8*ROWB}, v{T+3}")
I(f"v_bfe_u32 v{T+4}, v{T+2}, 2, 1")
I(f"v_lshl_add_u32 v{VV}, v{T+4}, 4, v{VV}")
I(f"v_bfe_u32 v{T+4}, v{T+2}, 3, 1")
I(f"v_lshl_add_u32 v{VV}, v{T+4}, 3, v{VV}")
I(f"v_bfe_u32 v{T+4}, v{T+2}, 4, 1")
I(f"v_lshl_add_u32 v{VV}, v{T+4}, 5, v{VV}")
I(f"v_and_b32 v{T+4}, 3, v{T+2}")
I(f"v_lshl_add_u32 v{VV}, v{T+4}, 1, v{VV}")
I(f"v_add_u32 v{VV}, s{sHEADOFF}, v{VV}")
I(f"v_cmp_gt_u32 s[44:45], 20, v{T+2}")
for i in range(16):
    I(f"v_mov_b32 v{V0+i}, 0x3f803f80")
    I(f"v_mov_b32 v{O+i}, 0")
I(f"v_mov_b32 v{T+5}, 0xff800000")
def fb_qk():
    I(f"buffer_load_dwordx4 v[{KA}:{KA+3}], v{VKM}, s[24:27], s48 offen")
    I(f"buffer_load_dwordx4 v[{KB_}:{KB_+3}], v{VKM}, s[24:27], s48 offen offset:{32*ROWB}")
    I(f"buffer_load_dwordx2 v[{KR}:{KR+1}], v{VKR}, s[24:27], s48 offen offset:32")
    I("s_waitcnt vmcnt(0)")
    I(mf_a(SA)); I(mf_a(SA+16, KB_))
    I("s_nop 9")
    I(mf_c(SA))
    I("s_nop 15")
    I("s_nop 4")
I("s_mov_b32 s48, 0")
emit("L_FB_MAX:")
fb_qk()
for i in range(16):
    I(f"v_max3_f32 v{T+5}, v{SA+2*i}, v{SA+2*i+1}, v{T+5}")
I(f"s_add_u32 s48, s48, {BLK}")
I(f"s_cmp_lt_u32 s48, {HEADB}")
I("s_cbranch_scc1 L_FB_MAX")
I(f"v_mov_b32 v{T+6}, v{T+5}")
I("s_nop 1")
I(f"v_permlane32_swap_b32 v{T+5}, v{T+6}")
I("s_nop 1")
I(f"v_max_f32 v{T+5}, v{T+5}, v{T+6}")
I("s_mov_b32 s48, 0")
emit("L_FB_PV:")
I("s_mov_b64 exec, s[44:45]")
for j in range(4):
    for t in range(8):
        I(f"buffer_load_ushort v{SB+8*j+t}, v{VV}, s[28:31], s48 offen offset:{(16*j+t)*ROWB}")
I("s_waitcnt vmcnt(0)")
for i in range(16):
    I(f"v_lshl_or_b32 v{V0+i}, v{SB+2*i+1}, 16, v{SB+2*i}")
I("s_mov_b64 exec, -1")
fb_qk()
for i in range(32):
    I(f"v_sub_f32 v{SA+i}, v{SA+i}, v{T+5}")
for i in range(32):
    I(f"v_exp_f32 v{SA+i}, v{SA+i}")
I("s_nop 1")
for j in range(4):
    I(mf_s(SA, j))
I(f"s_add_u32 s48, s48, {BLK}")
I(f"s_cmp_lt_u32 s48, {HEADB}")
I("s_cbranch_scc1 L_FB_PV")
I("s_nop 15")
I("s_branch L_FIN")

emit('.section .rodata,"a"')
emit(".p2align 6")
emit(f".amdhsa_kernel {NAME}_kernel")
emit(f"  .amdhsa_next_free_vgpr {NV}")
emit(f"  .amdhsa_next_free_sgpr {102 if PROF else 64}")
emit(f"  .amdhsa_accum_offset {NV}")
emit("  .amdhsa_group_segment_fixed_size 0")
emit("  .amdhsa_kernarg_size 48")
emit("  .amdhsa_user_sgpr_count 2")
emit("  .amdhsa_user_sgpr_kernarg_segment_ptr 1")
emit("  .amdhsa_system_sgpr_workgroup_id_x 1")
emit(".end_amdhsa_kernel")
path = sys.argv[1] if len(sys.argv) > 1 else f"cdna_kernels/{NAME}.s"
open(path, "w").write("\n".join(out) + "\n")
```

```python
import sys, struct, math, os

NAME = "standalone__fused_io_aware_attn__prompt"
H, S, D = 32, 2048, 20
ROWB = D * 2
HEADB = S * ROWB
TOTB = H * HEADB
VBASE = 81920
VRING = 61440
VEND = VBASE + VRING
ONES = VEND + (0 if 'conf' in os.environ.get('OPT', '') else 224)
BLK = 64 * ROWB
NSTEP = 4
TRIPB = NSTEP * BLK
LDS = ONES + TRIPB

OPT = set(os.environ.get("OPT", "").split(","))
PROF = os.environ.get("PROF", "") == "4"
FINE = "fine" in OPT
STFLAG = os.environ.get("STFLAG", "")
DF = os.environ.get("DF", "")

def f32(x): return struct.unpack("<I", struct.pack("<f", x))[0]
CSCALE = f32(D ** -0.5 * math.log2(math.e))

SA, SB, O = 0, 32, 64
QM, QR = 80, 84
KA, KB_, KR = 86, 90, 94
V0 = 96
VKM, VKR, IDX, VV, VINC, VDUM, VDMA, VQ = 112, 113, 114, 115, 116, 117, 118, 119
T = 120
NV = 128
sWAVE, sHEADOFF, sTRIP, sMASK, sSOFF, sISF, sLIM, sQOFF, sVINC = 33, 34, 35, 36, 37, 38, 39, 46, 47

out = []
def emit(s=""): out.append(s)
def I(s): out.append("    " + s)
def stamp(i):
    if PROF: I(f"s_memtime s[{64+2*i}:{65+2*i}]")
def rstamp(i):
    if PROF: I(f"s_memrealtime s[{64+2*i}:{65+2*i}]")
def fs(k):
    if FINE: I(f"s_memtime s[{64+2*k}:{65+2*k}]")

def mf_a(N, K=KA, c="0"): return f"v_mfma_f32_32x32x16_bf16 v[{N}:{N+15}], v[{K}:{K+3}], v[{QM}:{QM+3}], {c}"
def mf_c(N, K=KR, c=None): return f"v_mfma_f32_32x32x4_2b_bf16 v[{N}:{N+31}], v[{K}:{K+1}], v[{QR}:{QR+1}], {c or f'v[{N}:{N+31}]'} blgp:1"
def mf_s(Sx, j): return f"v_smfmac_f32_32x32x32_bf16 v[{O}:{O+15}], v[{V0+4*j}:{V0+4*j+3}], v[{Sx+8*j}:{Sx+8*j+7}], v{IDX}"

def burst(par, extra=None, last=False, bar=False):
    Sx = SA if par == 0 else SB
    N = SB if par == 0 else SA
    e = lambda i: f"v_exp_f32 v{Sx+i}, v{Sx+i}"
    a, b, c = mf_a(N), mf_a(N+16, KB_), mf_c(N)
    s = [mf_s(Sx, j) for j in range(4)]
    seq = [e(0), "s_setprio 1", e(1), e(2), e(3), e(4), a, e(5), e(6), e(7), b, e(8), e(9), e(10), s[0], e(11), e(12), e(13), c]
    seq += [e(i) for i in range(14, 22)] + [s[1], e(22), e(23), e(24), e(25), s[2]]
    seq += [e(i) for i in range(26, 32)]
    if "clus" in OPT:
        seq = [e(0), "s_setprio 1", e(1), e(2), e(3), e(4), a, e(5), e(6), e(7), b] + [e(i) for i in range(8, 12)] + [c]
        seq += [e(i) for i in range(12, 20)] + [s[0], e(20), e(21), e(22), s[1], e(23), e(24), e(25), s[2]] + [e(i) for i in range(26, 32)]
    if "cfirst" in OPT:
        c = mf_c(N, c="0"); a = mf_a(N, c=f"v[{N}:{N+15}]"); b = mf_a(N+16, KB_, c=f"v[{N+16}:{N+31}]")
        seq = [e(0), "s_setprio 1", e(1), e(2), e(3), e(4), c] + [e(i) for i in range(5, 14)] + [a, e(14), e(15), e(16), b, e(17), e(18), e(19), s[0], e(20), e(21), e(22), s[1], e(23), e(24), e(25), s[2]] + [e(i) for i in range(26, 32)]
    if "cf2" in OPT or "cf3" in OPT or "cf4" in OPT:
        c = mf_c(N, c="0"); a = mf_a(N, c=f"v[{N}:{N+15}]"); b = mf_a(N+16, KB_, c=f"v[{N+16}:{N+31}]")
    if "cf2" in OPT:
        seq = [e(0), "s_setprio 1", e(1), e(2), e(3), c] + [e(i) for i in range(4, 14)] + [a, e(14), e(15), e(16), b, e(17), e(18), e(19), s[0], e(20), e(21), e(22), s[1], e(23), e(24), e(25), s[2]] + [e(i) for i in range(26, 32)]
    if "cf3" in OPT:
        seq = [e(0), "s_setprio 1", e(1), e(2), e(3), c] + [e(i) for i in range(4, 12)] + [s[0], e(12), e(13), e(14), a, e(15), e(16), e(17), b, e(18), e(19), e(20), s[1], e(21), e(22), e(23), e(24), e(25), s[2]] + [e(i) for i in range(26, 32)]
    if "cf4" in OPT:
        seq = [e(0), "s_setprio 1", e(1), e(2), e(3), c] + [e(i) for i in range(4, 14)] + [a, e(14), e(15), e(16), b, e(17), e(18), e(19), e(20), e(21), s[0], e(22), e(23), e(24), s[1], e(25), e(26), e(27), s[2]] + [e(i) for i in range(28, 32)]
    if last:
        seq = [x for x in seq if x not in (a, b, c)]
    if extra:
        k = seq.index(e(28))
        seq = seq[:k] + extra + seq[k:]
    if bar:
        seq += ["s_waitcnt vmcnt(2)", "s_barrier"]
    else:
        seq += ["s_nop 1"]
    seq += [s[3], "s_setprio 2" if last else "s_setprio 0"]
    for x in seq: I(x)

def kreads(blk, ka=KA, kb=KB_, kr=KR):
    if "nok" in OPT and blk != 1 and ka == KA: return
    o = blk * BLK
    if "k128" in OPT and ka == KA:
        I(f"ds_read_b64 v[{kr}:{kr+1}], v{VKR} offset:{o}")
        I(f"ds_read_b128 v[{ka}:{ka+3}], v{VDUM} offset:{o}")
        I(f"ds_read_b128 v[{kb}:{kb+3}], v{VDUM} offset:{o+1024}")
        return
    I(f"ds_read_b64 v[{kr}:{kr+1}], v{VKR} offset:{o}")
    I(f"ds_read_b64 v[{ka}:{ka+1}], v{VKM} offset:{o}")
    I(f"ds_read_b64 v[{ka+2}:{ka+3}], v{VKM} offset:{o+8}")
    I(f"ds_read_b64 v[{kb}:{kb+1}], v{VKM} offset:{o+32*ROWB}")
    I(f"ds_read_b64 v[{kb+2}:{kb+3}], v{VKM} offset:{o+32*ROWB+8}")
def voff(blk, j): return blk * BLK + ROWB * (16 * (j // 2) + 4 * (j % 2))
def vreads(blk):
    if "nov" in OPT and blk != 0: return
    if "v128" in OPT:
        I("s_mov_b64 exec, s[50:51]")
        for j in range(4):
            I(f"ds_read_b128 v[{V0+4*j}:{V0+4*j+3}], v{T+7} offset:{blk*BLK + 640*j}")
        I("s_mov_b64 exec, -1")
        return
    for j in range(8):
        I(f"ds_read_b64_tr_b16 v[{V0+2*j}:{V0+2*j+1}], v{VV} offset:{voff(blk, j)}")
def dma():
    I(f"buffer_load_dwordx4 v{VDMA}, s[16:19], s{sSOFF} offen{DF} lds")
    I("s_addk_i32 m0, 4096")
    I(f"s_addk_i32 s{sSOFF}, 4096")
def cdma(tag):
    if "nodma" in OPT: return
    I(f"s_cmp_ge_u32 s{sSOFF}, s45")
    I(f"s_cbranch_scc1 L_ND{tag}")
    dma()
    emit(f"L_ND{tag}:")
def qloads():
    I(f"buffer_load_dwordx2 v[{QR}:{QR+1}], v{VQ}, s[12:15], 0 offen offset:32")
    I(f"buffer_load_dwordx4 v[{QM}:{QM+3}], v{VQ}, s[12:15], 0 offen")
def qconv(regs):
    for i, r in enumerate(regs):
        I(f"v_lshlrev_b32 v{T+2*i}, 16, v{r}")
        I(f"v_and_b32 v{T+2*i+1}, s41, v{r}")
    for i in range(2*len(regs)):
        I(f"v_mul_f32 v{T+i}, s40, v{T+i}")
    for i, r in enumerate(regs):
        I(f"v_cvt_pk_bf16_f32 v{r}, v{T+2*i}, v{T+2*i+1}")

hdr = open("cdna_kernels/%s.s.ref" % NAME).read().split("; Override")[0]
emit(hdr.rstrip())
emit("; Override launch geometry by editing the next line.")
emit(f"; @launch grid=(256,1,1) block=(512,1,1) lds={LDS}")
emit(""";
""")
emit('.amdgcn_target "amdgcn-amd-amdhsa--gfx950"')
emit(".text")
emit(f".globl {NAME}_kernel")
emit(".p2align 12")
emit(".p2align 8")
emit(f".type {NAME}_kernel,@function")
emit(f"{NAME}_kernel:")
DIAG = os.environ.get("DIAG", "")
if DIAG:
    I("s_memrealtime s[52:53]")
    I("s_memtime s[54:55]")
    I("s_load_dwordx2 s[60:61], s[0:1], 32")
XW = int(os.environ.get("XW", "0")); XWMID = int(os.environ.get("XWMID", "0"))
if XW or XWMID: I("s_load_dwordx2 s[56:57], s[0:1], 40")
rstamp(8)
stamp(0)
I("s_load_dwordx4 s[4:7], s[0:1], 8")
I("s_load_dwordx2 s[12:13], s[0:1], 0")
I("s_load_dwordx2 s[20:21], s[0:1], 24")
if PROF: I("s_load_dwordx2 s[60:61], s[0:1], 40")
I(f"v_readfirstlane_b32 s{sWAVE}, v0")
I("s_cmp_ge_u32 s2, 256")
I("s_cbranch_scc1 L_END")
I(f"v_and_b32 v{T+1}, 63, v0")
I(f"v_and_b32 v{T+2}, 31, v0")
I(f"v_bfe_u32 v{T+3}, v0, 5, 1")
I(f"s_lshr_b32 s{sWAVE}, s{sWAVE}, 6")
I("s_and_b32 s40, s2, 7")
I("s_lshr_b32 s41, s2, 6")
I("s_lshl2_add_u32 s40, s40, s41")
I(f"s_mov_b32 s45, {HEADB}")
I(f"s_mul_i32 s{sHEADOFF}, s40, s45")
I("s_and_b32 s41, s2, 0x38")
I(f"s_add_u32 s41, s41, s{sWAVE}")
I(f"s_mulk_i32 s41, {32*ROWB}")
I(f"s_add_u32 s{sQOFF}, s41, s{sHEADOFF}")
I(f"v_mul_u32_u24 v{VKM}, {ROWB}, v{T+2}")
I(f"v_lshl_add_u32 v{VKM}, v{T+3}, 4, v{VKM}")
I(f"v_add_u32 v{VQ}, s{sQOFF}, v{VKM}")
I(f"v_lshl_add_u32 v{VDMA}, v{T+1}, 4, s{sHEADOFF}")
I(f"s_and_b32 s42, s{sWAVE}, 3")
I(f"s_lshl_b32 s{sSOFF}, s42, 10")
I(f"s_lshr_b32 s{sISF}, s{sWAVE}, 2")
I(f"s_mul_i32 s43, s{sISF}, s45")
I(f"s_add_u32 m0, s43, s{sSOFF}")
I(f"s_mov_b32 s14, {TOTB}")
I("s_mov_b32 s15, 0x00020000")
I("s_mov_b64 s[18:19], s[14:15]")
I("s_mov_b64 s[26:27], s[14:15]")
I(f"s_cmp_eq_u32 s{sWAVE}, 3")
I(f"s_cselect_b32 s44, 0x1000, s{sSOFF}")
I("s_cselect_b32 s43, 0, s45")
I("s_add_u32 s43, s43, s44")
I(f"s_mov_b32 s{sLIM}, {VEND}")
I(f"s_cmp_lg_u32 s{sISF}, 0")
I("s_cbranch_scc1 L_SETUP")
I("s_setprio 3")
I(f"s_cmp_eq_u32 s{sWAVE}, 3")
I("s_waitcnt lgkmcnt(0)")
fs(10)
I("s_mov_b64 s[16:17], s[4:5]")
I(f"buffer_load_dwordx4 v{VDMA}, s[16:19], s{sSOFF} offen{DF} lds")
I("s_cselect_b64 s[24:25], s[4:5], s[6:7]")
I("s_mov_b32 m0, s43")
I(f"s_addk_i32 s{sSOFF}, 4096")
I(f"buffer_load_dwordx4 v{VDMA}, s[24:27], s44 offen{DF} lds")
qloads()
fs(11)
I("s_barrier")
I(f"s_mov_b32 m0, s{sSOFF}")
I(f"s_mov_b32 s{sLIM}, -1")
if "ldelay" in OPT: I("s_setprio 0")
dma()
dma()
if "ldelay" in OPT: I("s_setprio 3")
emit("L_SETUP:")
maskB = sum(1 << t for t in (0, 1, 2, 4))
I(f"s_movk_i32 s{sMASK}, {maskB}")
I("s_mov_b64 s[22:23], s[14:15]")
I(f"v_mul_u32_u24 v{VKR}, {ROWB}, v{T+1}")
I(f"v_add_u32 v{VKR}, 32, v{VKR}")
I(f"v_lshrrev_b32 v{T+4}, 1, v{T+2}")
I(f"v_lshlrev_b32 v{T+4}, 2, v{T+4}")
I(f"v_and_or_b32 v{T+4}, v{T+2}, 1, v{T+4}")
I(f"v_mul_u32_u24 v{T+4}, {4*ROWB}, v{T+4}")
I(f"v_add_u32 v{T+4}, {ONES}, v{T+4}")
I(f"v_mov_b32 v{SB}, 0x3f80")
I(f"v_mov_b32 v{SB+1}, 0")
I(f"v_mov_b64 v[{SB+2}:{SB+3}], 0")
I(f"ds_write_b128 v{T+4}, v[{SB}:{SB+3}]")
I(f"v_mov_b32 v{IDX}, 0xdddddddd")
I(f"v_bfe_u32 v{T+4}, v{T+1}, 2, 2")
I(f"v_lshl_add_u32 v{T+4}, v{T+3}, 3, v{T+4}")
I(f"v_mul_u32_u24 v{T+4}, {ROWB}, v{T+4}")
I(f"v_and_b32 v{T+5}, 1, v{T+1}")
I(f"v_lshl_add_u32 v{T+4}, v{T+5}, 4, v{T+4}")
I(f"v_and_b32 v{T+6}, 2, v{T+1}")
I(f"v_lshl_add_u32 v{T+4}, v{T+6}, 2, v{T+4}")
I(f"v_and_b32 v{T+5}, 16, v{T+1}")
I(f"v_lshl_add_u32 v{T+4}, v{T+5}, 1, v{T+4}")
I(f"v_add_u32 v{T+4}, s45, v{T+4}")
I(f"v_and_b32 v{T+5}, 19, v{T+1}")
I(f"v_cmp_lt_u32 vcc, 16, v{T+5}")
I(f"v_lshlrev_b32 v{T+6}, 2, v{T+6}")
if "one5" in OPT: I(f"v_add_u32 v{T+6}, {ONES}, v{T+6}")
else: I(f"v_sub_u32 v{T+6}, {ONES+8}, v{T+6}")
I(f"v_cndmask_b32 v{VV}, v{T+4}, v{T+6}, vcc")
I(f"v_cndmask_b32 v{VINC}, 1, 0, vcc")
for i in range(8):
    I(f"v_mov_b64 v[{O+2*i}:{O+2*i+1}], 0")
I(f"s_mov_b32 s{sTRIP}, 0")
I(f"s_mov_b32 s40, 0x{CSCALE:08x}")
I("s_mov_b32 s41, 0xffff0000")
I(f"s_movk_i32 s48, {TRIPB}")
if "add64" in OPT: I(f"s_movk_i32 s49, {TRIPB}")
I(f"s_cmp_eq_u32 s{sISF}, 0")
I("s_cbranch_scc1 L_R1")
I("s_setprio 2")
I("s_waitcnt lgkmcnt(0)")
fs(10)
I("s_mov_b64 s[16:17], s[6:7]")
I("s_barrier")
dma()
qloads()
fs(11)
dma()
dma()
emit("L_R1:")
dma()
I(f"s_cmp_lg_u32 s{sISF}, 0")
I("s_waitcnt lgkmcnt(0)")
fs(12)
I("s_cbranch_scc1 L_B0")
I("s_waitcnt vmcnt(5)")
emit("L_B0:")
if PROF:
    stamp(4); I("s_waitcnt lgkmcnt(0)")
I("s_barrier")
if DIAG == "pro":
    I("s_memrealtime s[56:57]"); I("s_waitcnt lgkmcnt(0)")
kreads(0, SB, SB+4, SB+8)
if "k128" in OPT:
    I(f"v_subrev_u32 v{VDUM}, s{sHEADOFF}, v{VDMA}")
fs(13)
I("s_waitcnt vmcnt(4)")
fs(14)
qconv([QR, QR+1])
I("s_waitcnt vmcnt(3) lgkmcnt(%d)" % (0 if FINE else 4))
I("s_nop 0")
I(mf_c(SA, SB+8, "0"))
qconv([QM, QM+1, QM+2, QM+3])
I(f"s_cmp_lg_u32 s{sISF}, 0")
I("s_waitcnt lgkmcnt(0)")
I(mf_a(SA, SB, f"v[{SA}:{SA+15}]"))
if "v128" in OPT:
    I("s_mov_b32 s50, 0x000fffff"); I("s_mov_b32 s51, 0x000fffff")
    I(f"v_mbcnt_lo_u32_b32 v{T+7}, s50, 0"); I(f"v_mbcnt_hi_u32_b32 v{T+7}, s51, v{T+7}")
    I(f"v_lshlrev_b32 v{T+7}, 4, v{T+7}"); I(f"v_add_u32 v{T+7}, s45, v{T+7}")
    for i in range(16): I(f"v_mov_b32 v{V0+i}, 0")
I("s_cbranch_scc1 L_FGO")
kreads(1)
I(mf_a(SA+16, SB+4, f"v[{SA+16}:{SA+31}]"))
def first_burst():
    Sx, N = SA, SB
    e = lambda i: f"v_exp_f32 v{Sx+i}, v{Sx+i}"
    vr = lambda j: f"ds_read_b64_tr_b16 v[{V0+2*j}:{V0+2*j+1}], v{VV} offset:{voff(0, j)}"
    a, b, c = mf_a(N), mf_a(N+16, KB_), mf_c(N)
    s = [mf_s(Sx, j) for j in range(4)]
    for j in range(5): I(vr(j))
    fs(15)
    seq = [e(0), "s_setprio 1", e(1), vr(5), e(2), vr(6), e(3), vr(7), e(4),
           f"buffer_load_dwordx4 v{VDMA}, s[16:19], s{sSOFF} offen{DF} lds", e(5), "s_addk_i32 m0, 4096", e(6), f"s_addk_i32 s{sSOFF}, 4096", e(7),
           "s_waitcnt lgkmcnt(0)", a, e(8), e(9), e(10), b, e(11), e(12), e(13), s[0], e(14), e(15), e(16), c]
    seq += [e(i) for i in range(17, 25)] + [s[1], e(25), e(26), e(27), s[2], e(28), e(29), e(30), e(31)]
    seq += ["s_waitcnt vmcnt(2)", "s_barrier", s[3], "s_setprio 0"]
    for x in seq: I(x)
first_burst()
fs(16)
I("s_branch L_OFF1")
emit("L_BAR2:")
I(f"s_cmp_lg_u32 s{sISF}, 0")
I("s_cbranch_scc1 L_FBAR2")
KADD = [f"v_add_u32 v{VKM}, s48, v{VKM}", f"v_add_u32 v{VKR}, s48, v{VKR}"]
if "add64" in OPT: KADD = [f"v_lshl_add_u64 v[{VKM}:{VKR}], v[{VKM}:{VKR}], 0, s[48:49]"]
burst(0, KADD, bar=True)
I("s_branch L_OFF3")
emit("L_FGO:")
I(mf_a(SA+16, SB+4, f"v[{SA+16}:{SA+31}]"))
I("s_setprio 0")
emit("L_LOOP:")
kreads(1); vreads(0)
cdma(0)
I(f"s_cmp_lg_u32 s{sTRIP}, 0")
I("s_cbranch_scc1 L_BURST0")
I("s_waitcnt vmcnt(3) lgkmcnt(0)")
fs(15)
I("s_barrier")
emit("L_BURST0:")
I("s_waitcnt lgkmcnt(0)")
burst(0)
emit("L_OFF1:")
kreads(2); vreads(1)
cdma(1)
I("s_waitcnt lgkmcnt(0)")
burst(1)
kreads(3); vreads(2)
cdma(2)
I(f"s_cmp_ge_u32 m0, s{sLIM}")
I(f"s_cselect_b32 s42, {VRING}, 0")
I("s_sub_u32 m0, m0, s42")
I(f"s_cmp_lg_u32 s{sTRIP}, 4")
I("s_cbranch_scc1 L_NT")
I("s_waitcnt vmcnt(0)")
if XWMID:
    I("s_mov_b32 s58, 0x10000000"); I("s_mov_b32 s59, 0x00020000")
    I("s_lshl_b32 s50, s2, 3"); I(f"s_add_u32 s50, s50, s{sWAVE}"); I(f"s_mul_i32 s50, s50, {XWMID*1024}"); I(f"s_add_u32 s50, s50, 0x400000"); I(f"s_sub_u32 s50, s50, s{sHEADOFF}")
    for i in range(XWMID):
        I(f"buffer_store_dwordx4 v[{QM}:{QM+3}], v{VDMA}, s[56:59], s50 offen"); I("s_addk_i32 s50, 1024")
if "notouch" not in OPT and "k128" not in OPT: I(f"buffer_load_dword v{VDUM}, off, s[20:23], s{sQOFF}")
emit("L_NT:")
I(f"s_bitcmp1_b32 s{sMASK}, s{sTRIP}")
I("s_waitcnt lgkmcnt(0)")
I("s_cbranch_scc1 L_BAR2")
I("s_branch L_BURST2")
emit("L_FBAR2:")
I("s_waitcnt vmcnt(2)")
I("s_barrier")
emit("L_BURST2:")
burst(0, KADD)
emit("L_OFF3:")
vreads(3)
I(f"s_cmp_eq_u32 s{sTRIP}, 7")
I("s_cbranch_scc1 L_LAST")
kreads(0)
cdma(3)
I(f"s_cmp_eq_u32 s{sTRIP}, 5")
I(f"s_cselect_b32 s{sVINC}, {TRIPB - VRING}, s48")
I(f"s_add_u32 s{sTRIP}, s{sTRIP}, 1")
I("s_waitcnt lgkmcnt(0)")
burst(1, [f"v_mad_i32_i24 v{VV}, v{VINC}, s{sVINC}, v{VV}"])
I("s_branch L_LOOP")
emit("L_LAST:")
I("s_waitcnt lgkmcnt(0)")
burst(1, None, last=True)
stamp(6)
rstamp(17)
I(f"s_mov_b32 s40, 0x71800000")
I("s_nop 9")
emit("L_FIN:")
if "one5" in OPT:
    I(f"v_mov_b32 v{O+12}, v{O+8}")
    I("s_nop 1")
    I(f"v_permlane32_swap_b32 v{O+8}, v{O+12}")
I(f"v_rcp_f32 v{T}, v{O+12}")
I(f"v_cmp_le_f32 vcc, 1.0, v{O+12}")
def muls(r):
    for i in r:
        if "nopk" not in OPT:
            I(f"v_pk_mul_f32 v[{O+2*i}:{O+2*i+1}], v[{O+2*i}:{O+2*i+1}], v[{T}:{T+1}] op_sel_hi:[1,0]")
        else:
            I(f"v_mul_f32 v{O+2*i}, v{T}, v{O+2*i}"); I(f"v_mul_f32 v{O+2*i+1}, v{T}, v{O+2*i+1}")
muls(range(4))
for i in range(4):
    I(f"v_cvt_pk_bf16_f32 v{SA+i}, v{O+2*i}, v{O+2*i+1}")
I(f"buffer_store_dwordx4 v[{SA}:{SA+3}], v{VQ}, s[20:23], 0 offen {STFLAG}")
if "efine" in OPT: I("s_memtime s[84:85]")
muls(range(4, 6))
for i in range(4, 6):
    I(f"v_cvt_pk_bf16_f32 v{SA+i}, v{O+2*i}, v{O+2*i+1}")
I("s_mov_b32 exec_hi, 0")
I(f"buffer_store_dwordx2 v[{SA+4}:{SA+5}], v{VQ}, s[20:23], 0 offen offset:32 {STFLAG}")
I("s_mov_b32 exec_hi, -1")
if XW:
    I("s_mov_b32 s58, 0x10000000"); I("s_mov_b32 s59, 0x00020000")
    I("s_lshl_b32 s50, s2, 3"); I(f"s_add_u32 s50, s50, s{sWAVE}"); I(f"s_mul_i32 s50, s50, {XW*1024}"); I(f"s_add_u32 s50, s50, 0x400000"); I(f"s_sub_u32 s50, s50, s{sHEADOFF}")
    for i in range(XW):
        I(f"buffer_store_dwordx4 v[{SA}:{SA+3}], v{VDMA}, s[56:59], s50 offen"); I("s_addk_i32 s50, 1024")
if "efine" in OPT:
    I("s_memtime s[86:87]")
    I("s_waitcnt vmcnt(1)")
    I("s_memtime s[88:89]")
    I("s_waitcnt vmcnt(0)")
    I("s_memtime s[90:91]")
I("s_setprio 0")
I(f"s_cmp_eq_u32 s{sTRIP}, 9")
I("s_cbranch_scc1 L_DONE")
I(f"v_cmp_ge_f32 s[42:43], s40, v{O+12}")
I(f"v_dot2_f32_bf16 v{T+2}, v{SA}, 0, 0")
for i in range(1, 6):
    I(f"v_dot2_f32_bf16 v{T+2}, v{SA+i}, 0, v{T+2}")
I("s_and_b64 vcc, vcc, s[42:43]")
I("s_nop 1")
I(f"v_cmp_eq_f32 s[42:43], 0, v{T+2}")
I("s_nop 0")
I("s_and_b64 vcc, vcc, s[42:43]")
I("s_cmp_eq_u64 vcc, -1")
if not FINE and not (OPT & {"nok", "nov", "nodma", "k128", "v128"}): I("s_cbranch_scc0 L_FALLBACK")
emit("L_DONE:")
if DIAG:
    I(f"s_cmp_lg_u32 s{sWAVE}, 7")
    I("s_cbranch_scc1 L_END")
    I("s_waitcnt vmcnt(0)")
    I("s_memrealtime s[58:59]")
    I("s_movk_i32 s62, 256")
    I("s_mov_b32 s63, 0x00020000")
    I("s_mov_b64 exec, 1")
    I("s_waitcnt lgkmcnt(0)")
    I("s_not_b32 s40, s52")
    I("v_mov_b32 v1, s40")
    if DIAG == "skew": I("v_mov_b32 v2, s52")
    if DIAG == "span": I("v_mov_b32 v2, s58")
    if DIAG in ("pro", "dur"):
        I("s_sub_u32 s40, %s, s52" % ("s56" if DIAG == "pro" else "s58"))
        I("v_mov_b32 v2, s40")
        I("buffer_atomic_add v2, off, s[60:63], 0 offset:4")
    else:
        I("buffer_atomic_umax v1, off, s[60:63], 0")
        I("buffer_atomic_umax v2, off, s[60:63], 0 offset:4")
    I("s_waitcnt vmcnt(0)")
    I("v_mov_b32 v3, 1")
    I("buffer_atomic_add v3, off, s[60:63], 0 offset:8 sc0")
    I("s_waitcnt vmcnt(0)")
    I("v_readfirstlane_b32 s40, v3")
    I("s_nop 3")
    I("s_cmp_lg_u32 s40, 255")
    I("s_cbranch_scc1 L_END")
    I("v_mov_b32 v1, 0")
    I("v_mov_b32 v2, 0")
    I("buffer_atomic_add v1, off, s[60:63], 0 sc0")
    I("buffer_atomic_add v2, off, s[60:63], 0 offset:4 sc0")
    I("s_waitcnt vmcnt(0)")
    I("v_readfirstlane_b32 s40, v1")
    I("v_readfirstlane_b32 s41, v2")
    I("s_nop 3")
    if DIAG in ("pro", "dur"):
        I("s_lshr_b32 s41, s41, 8")
    else:
        I("s_not_b32 s40, s40")
        I("s_sub_u32 s41, s41, s40")
    I("s_min_u32 s41, s41, 5000")
    I("v_mov_b32 v1, s41")
    I("buffer_store_dword v1, off, s[60:63], 0 offset:12")
    I("s_mul_i32 s41, s41, %s" % os.environ.get("KMUL", "10"))
    I("s_memrealtime s[42:43]")
    I("s_waitcnt lgkmcnt(0)")
    emit("L_SPIN:")
    I("s_memrealtime s[44:45]")
    I("s_waitcnt lgkmcnt(0)")
    I("s_sub_u32 s44, s44, s42")
    I("s_cmp_lt_u32 s44, s41")
    I("s_cbranch_scc1 L_SPIN")
if PROF:
    I("s_waitcnt vmcnt(0)")
    stamp(7)
    rstamp(9)
    I("s_sleep 40")
    I("s_mov_b32 s62, 0x10000000")
    I("s_mov_b32 s63, 0x00020000")
    I("s_lshl_b32 s40, s2, 3")
    I(f"s_add_u32 s40, s40, s{sWAVE}")
    I("s_lshl_b32 s40, s40, 7")
    I("s_mov_b64 exec, 1")
    I("v_mov_b32 v1, s40")
    I("s_waitcnt lgkmcnt(0)")
    for i in range(18):
        I(f"v_mov_b32 v2, s{64+2*i}")
        I(f"buffer_store_dword v2, v1, s[60:63], 0 offen offset:{4*i}")
emit("L_END:")
I("s_endpgm")

emit("L_FALLBACK:")
I("s_waitcnt vmcnt(0)")
I(f"s_mov_b32 s{sTRIP}, 9")
I("s_mov_b64 s[24:25], s[4:5]")
I("s_mov_b64 s[26:27], s[14:15]")
I("s_mov_b64 s[28:29], s[6:7]")
I("s_mov_b64 s[30:31], s[14:15]")
I(f"v_mbcnt_lo_u32_b32 v{T+1}, -1, 0")
I(f"v_mbcnt_hi_u32_b32 v{T+1}, -1, v{T+1}")
I(f"v_and_b32 v{T+2}, 31, v{T+1}")
I(f"v_lshrrev_b32 v{T+3}, 5, v{T+1}")
I(f"v_mul_u32_u24 v{VKM}, {ROWB}, v{T+2}")
I(f"v_lshl_add_u32 v{VKM}, v{T+3}, 4, v{VKM}")
I(f"v_add_u32 v{VKM}, s{sHEADOFF}, v{VKM}")
I(f"v_mul_u32_u24 v{VKR}, {ROWB}, v{T+1}")
I(f"v_add_u32 v{VKR}, s{sHEADOFF}, v{VKR}")
I(f"v_mul_u32_u24 v{VV}, {8*ROWB}, v{T+3}")
I(f"v_bfe_u32 v{T+4}, v{T+2}, 2, 1")
I(f"v_lshl_add_u32 v{VV}, v{T+4}, 4, v{VV}")
I(f"v_bfe_u32 v{T+4}, v{T+2}, 3, 1")
I(f"v_lshl_add_u32 v{VV}, v{T+4}, 3, v{VV}")
I(f"v_bfe_u32 v{T+4}, v{T+2}, 4, 1")
I(f"v_lshl_add_u32 v{VV}, v{T+4}, 5, v{VV}")
I(f"v_and_b32 v{T+4}, 3, v{T+2}")
I(f"v_lshl_add_u32 v{VV}, v{T+4}, 1, v{VV}")
I(f"v_add_u32 v{VV}, s{sHEADOFF}, v{VV}")
I(f"v_cmp_gt_u32 s[44:45], 20, v{T+2}")
for i in range(16):
    I(f"v_mov_b32 v{V0+i}, 0x3f803f80")
    I(f"v_mov_b32 v{O+i}, 0")
I(f"v_mov_b32 v{T+5}, 0xff800000")
def fb_qk():
    I(f"buffer_load_dwordx4 v[{KA}:{KA+3}], v{VKM}, s[24:27], s48 offen")
    I(f"buffer_load_dwordx4 v[{KB_}:{KB_+3}], v{VKM}, s[24:27], s48 offen offset:{32*ROWB}")
    I(f"buffer_load_dwordx2 v[{KR}:{KR+1}], v{VKR}, s[24:27], s48 offen offset:32")
    I("s_waitcnt vmcnt(0)")
    I(mf_a(SA)); I(mf_a(SA+16, KB_))
    I("s_nop 9")
    I(mf_c(SA))
    I("s_nop 15")
    I("s_nop 4")
I("s_mov_b32 s48, 0")
emit("L_FB_MAX:")
fb_qk()
for i in range(16):
    I(f"v_max3_f32 v{T+5}, v{SA+2*i}, v{SA+2*i+1}, v{T+5}")
I(f"s_add_u32 s48, s48, {BLK}")
I(f"s_cmp_lt_u32 s48, {HEADB}")
I("s_cbranch_scc1 L_FB_MAX")
I(f"v_mov_b32 v{T+6}, v{T+5}")
I("s_nop 1")
I(f"v_permlane32_swap_b32 v{T+5}, v{T+6}")
I("s_nop 1")
I(f"v_max_f32 v{T+5}, v{T+5}, v{T+6}")
I("s_mov_b32 s48, 0")
emit("L_FB_PV:")
I("s_mov_b64 exec, s[44:45]")
for j in range(4):
    for t in range(8):
        I(f"buffer_load_ushort v{SB+8*j+t}, v{VV}, s[28:31], s48 offen offset:{(16*j+t)*ROWB}")
I("s_waitcnt vmcnt(0)")
for i in range(16):
    I(f"v_lshl_or_b32 v{V0+i}, v{SB+2*i+1}, 16, v{SB+2*i}")
I("s_mov_b64 exec, -1")
fb_qk()
for i in range(32):
    I(f"v_sub_f32 v{SA+i}, v{SA+i}, v{T+5}")
for i in range(32):
    I(f"v_exp_f32 v{SA+i}, v{SA+i}")
I("s_nop 1")
for j in range(4):
    I(mf_s(SA, j))
I(f"s_add_u32 s48, s48, {BLK}")
I(f"s_cmp_lt_u32 s48, {HEADB}")
I("s_cbranch_scc1 L_FB_PV")
I("s_nop 15")
I("s_branch L_FIN")

emit('.section .rodata,"a"')
emit(".p2align 6")
emit(f".amdhsa_kernel {NAME}_kernel")
emit(f"  .amdhsa_next_free_vgpr {NV}")
emit(f"  .amdhsa_next_free_sgpr {102 if PROF else 64}")
emit(f"  .amdhsa_accum_offset {NV}")
emit("  .amdhsa_group_segment_fixed_size 0")
emit("  .amdhsa_kernarg_size 48")
emit("  .amdhsa_user_sgpr_count 2")
emit("  .amdhsa_user_sgpr_kernarg_segment_ptr 1")
emit("  .amdhsa_system_sgpr_workgroup_id_x 1")
emit(".end_amdhsa_kernel")
path = sys.argv[1] if len(sys.argv) > 1 else f"cdna_kernels/{NAME}.s"
open(path, "w").write("\n".join(out) + "\n")
```
